```python
import torch

def _softmax(x, axis=-1):
    return torch.softmax(x, dim=axis)
def _gelu(x):
    return torch.nn.functional.gelu(x, approximate="tanh")
def _silu(x):
    return torch.nn.functional.silu(x)
def _sigmoid(x):
    return torch.sigmoid(x)
def _layernorm(x, axis=-1, eps=1e-5):
    m = x.mean(dim=axis, keepdim=True)
    v = x.var(dim=axis, keepdim=True, unbiased=False)
    return (x - m) / torch.sqrt(v + eps)
def _scatter_add(tgt, idx, src, axis=0):
    return tgt.clone().index_add_(axis, idx, src)
def _segment_sum(src, seg, n):
    out = torch.zeros((n,) + src.shape[1:], dtype=src.dtype)
    return out.index_add_(0, seg, src)
def _pad(x, pw):
    flat = tuple(v for pair in reversed(pw) for v in pair)
    return torch.nn.functional.pad(x, flat)

kernel_name = 'concat_heads__mha_block_cached__mha_block_cached__near_ridge'

def setup_inputs():

    _w = (lambda a: (lambda t: t.to(torch.bfloat16) if t.is_floating_point() else t)(torch.as_tensor(a)))
    def _A_setup():
        B, Sq, D = 8, 112, 1024
        H, Sk, Dh = 32, 512, 128
        return {
            "x": _w((lambda *s: torch.randn(*s, dtype=torch.bfloat16) * 0.8)(B, Sq, D)),
            "k_cache": _w((lambda *s: torch.randn(*s, dtype=torch.bfloat16) * 0.8)(B, H, Sk, Dh)),
            "v_cache": _w((lambda *s: torch.randn(*s, dtype=torch.bfloat16) * 0.05)(B, H, Sk, Dh)),
            "wq": _w((lambda *s: torch.randn(*s, dtype=torch.bfloat16) * 0.8)(D, H * Dh) * (D ** -0.5)),
            "wo": _w((lambda *s: torch.randn(*s, dtype=torch.bfloat16) * 0.05)(H * Dh, D) * ((H * Dh) ** -0.5)),
        }
    _A_in = _A_setup()

    def _B_setup():
        B, Sq, D = 8, 112, 1024
        H, Sk, Dh = 32, 512, 128
        return {
            "x": _w((lambda *s: torch.randn(*s, dtype=torch.bfloat16) * 0.8)(B, Sq, D)),
            "k_cache": _w((lambda *s: torch.randn(*s, dtype=torch.bfloat16) * 0.8)(B, H, Sk, Dh)),
            "v_cache": _w((lambda *s: torch.randn(*s, dtype=torch.bfloat16) * 0.05)(B, H, Sk, Dh)),
            "wq": _w((lambda *s: torch.randn(*s, dtype=torch.bfloat16) * 0.8)(D, H * Dh) * (D ** -0.5)),
            "wo": _w((lambda *s: torch.randn(*s, dtype=torch.bfloat16) * 0.05)(H * Dh, D) * ((H * Dh) ** -0.5)),
        }
    _B_in = _B_setup()

    return {
        "A_x": _A_in["x"],
        "A_k_cache": _A_in["k_cache"],
        "A_v_cache": _A_in["v_cache"],
        "A_wq": _A_in["wq"],
        "A_wo": _A_in["wo"],
        "B_x": _B_in["x"],
        "B_k_cache": _B_in["k_cache"],
        "B_v_cache": _B_in["v_cache"],
        "B_wq": _B_in["wq"],
        "B_wo": _B_in["wo"],
    }

def reference(A_x, A_k_cache, A_v_cache, A_wq, A_wo, B_x, B_k_cache, B_v_cache, B_wq, B_wo):
    def _A_ref(x, k_cache, v_cache, wq, wo):
        B, Sq, D = x.shape
        H, Dh = 32, 128
        q = (lambda x, *d: x.permute(*d))((x @ wq).reshape(B, Sq, H, Dh), 0, 2, 1, 3)
        scores = torch.einsum("bhqd,bhkd->bhqk", q, k_cache) * (Dh ** -0.5)
        p = _softmax(scores, axis=-1)
        o = torch.einsum("bhqk,bhkd->bhqd", p, v_cache)
        return (lambda x, *d: x.permute(*d))(o, 0, 2, 1, 3).reshape(B, Sq, H * Dh) @ wo

    def _B_ref(x, k_cache, v_cache, wq, wo):
        B, Sq, D = x.shape
        H, Dh = 32, 128
        q = (lambda x, *d: x.permute(*d))((x @ wq).reshape(B, Sq, H, Dh), 0, 2, 1, 3)
        scores = torch.einsum("bhqd,bhkd->bhqk", q, k_cache) * (Dh ** -0.5)
        p = _softmax(scores, axis=-1)
        o = torch.einsum("bhqk,bhkd->bhqd", p, v_cache)
        return (lambda x, *d: x.permute(*d))(o, 0, 2, 1, 3).reshape(B, Sq, H * Dh) @ wo

    a = _A_ref(A_x, A_k_cache, A_v_cache, A_wq, A_wo)
    b = _B_ref(B_x, B_k_cache, B_v_cache, B_wq, B_wo)
    return torch.concatenate([a, b], axis=-1)
```

```python
import sys, math

OUT = sys.argv[1] if len(sys.argv) > 1 else "out.s"

class Asm:
    def __init__(self):
        self.lines = []
        self.vm_seq = 0
        self.lg_seq = 0
    def e(self, s):
        self.lines.append("    " + s)
    def label(self, s):
        self.lines.append(s + ":")
    def c(self, s):
        self.lines.append("    ; " + s)
    def vm(self, s):
        self.e(s); self.vm_seq += 1
        return self.vm_seq
    def lg(self, s):
        self.e(s); self.lg_seq += 1
        return self.lg_seq
    def wait(self, vm=None, lg=None):
        parts = []
        if vm is not None:
            n = self.vm_seq - vm
            assert n >= 0
            parts.append(f"vmcnt({min(n, 63)})")
        if lg is not None:
            n = self.lg_seq - lg
            assert n >= 0
            parts.append(f"lgkmcnt({min(n, 15)})")
        self.e("s_waitcnt " + " ".join(parts))
    def text(self):
        return "\n".join(self.lines) + "\n"

def vr(b, n=1):
    return f"v{b}" if n == 1 else f"v[{b}:{b+n-1}]"

SCALE = 128 ** -0.5
CEXP = SCALE * math.log2(math.e)
import struct
def f32bits(x):
    return "0x%08x" % struct.unpack("<I", struct.pack("<f", x))[0]

NT = " nt"

def gen_attn():
    a = Asm()
    ACC = 0
    S = 64
    XF = 64
    QF = 128
    PF = 160
    AF = 192
    KA = 224
    VA = 232
    DK = 236
    DW = 240
    DV = 244
    XO = 245
    M = 246; L = 247
    T0 = 248
    NSLOT = 5
    SLOT = 16384

    a.label("attn_kernel")
    a.e("s_cmp_ge_u32 s2, 512")
    a.e("s_cbranch_scc1 L_attn_done")
    a.e("s_load_dwordx8 s[44:51], s[0:1], 0")
    a.e("s_load_dwordx8 s[52:59], s[0:1], 40")
    a.e("s_load_dwordx2 s[60:61], s[0:1], 96")
    a.e("v_lshrrev_b32 v248, 6, v0")
    a.e("v_and_b32 v249, 63, v0")
    a.e("s_nop 0")
    a.e("v_readfirstlane_b32 s24, v248")
    a.e("s_and_b32 s30, s2, 7")
    a.e("s_lshr_b32 s31, s2, 3")
    a.e("s_lshr_b32 s32, s30, 2")
    a.e("s_and_b32 s33, s30, 3")
    a.e("s_lshl_b32 s33, s33, 3")
    a.e("s_and_b32 s34, s31, 7")
    a.e("s_add_u32 s33, s33, s34")
    a.e("s_lshr_b32 s34, s31, 3")
    a.e("s_mul_i32 s25, s34, 229376")
    a.e("s_lshl_b32 s26, s33, 8")
    a.e("s_lshl_b32 s27, s34, 5")
    a.e("s_add_u32 s27, s27, s33")
    a.e("s_lshl_b32 s27, s27, 17")
    a.e("s_mul_i32 s28, s32, 7340032")
    a.e("s_mul_i32 s35, s34, 917504")
    a.e("s_add_u32 s28, s28, s35")
    a.e("s_add_u32 s28, s28, s26")
    a.e("s_lshl_b32 s29, s24, 12")
    a.e(f"s_mov_b32 s42, {f32bits(CEXP)}")
    a.e("s_waitcnt lgkmcnt(0)")
    a.e("s_cmp_eq_u32 s32, 0")
    for d, (sa, sb) in ((4, (44, 52)), (12, (46, 54)), (16, (48, 56)), (8, (50, 58))):
        a.e(f"s_cselect_b32 s{d}, s{sa}, s{sb}")
        a.e(f"s_cselect_b32 s{d+1}, s{sa+1}, s{sb+1}")
    a.e("s_mov_b32 s6, 1835008"); a.e("s_mov_b32 s7, 0x00020000")
    a.e("s_mov_b32 s10, 0x800000"); a.e("s_mov_b32 s11, 0x00020000")
    a.e("s_mov_b32 s14, 0x2000000"); a.e("s_mov_b32 s15, 0x00020000")
    a.e("s_mov_b32 s18, 0x2000000"); a.e("s_mov_b32 s19, 0x00020000")
    a.e("s_mov_b32 s20, s60"); a.e("s_mov_b32 s21, s61")
    a.e("s_mov_b32 s22, 14680064"); a.e("s_mov_b32 s23, 0x00020000")
    lane = 249
    a.e(f"v_lshrrev_b32 v250, 4, v{lane}")
    a.e(f"v_and_b32 v251, 15, v{lane}")
    a.e("v_xor_b32 v252, v250, v251")
    a.e("s_lshl_b32 s30, s24, 12")
    a.e("v_lshlrev_b32 v253, 8, v250")
    a.e("v_add_u32 v253, s30, v253")
    for i in range(4):
        a.e(f"v_xor_b32 v254, {4*i}, v252")
        a.e(f"v_lshl_add_u32 v{DK+i}, v254, 4, v253")
    a.e("v_lshlrev_b32 v254, 2, v250")
    a.e("v_xor_b32 v254, v254, v251")
    a.e(f"v_lshl_add_u32 v{DV}, v254, 4, v253")
    a.e("s_lshl_b32 s30, s24, 17")
    a.e("v_lshlrev_b32 v253, 13, v250")
    a.e("v_add_u32 v253, s30, v253")
    a.e("v_lshl_add_u32 v253, v254, 4, v253")
    for i in range(4):
        a.e(f"v_add_u32 v{DW+i}, {i*(4*8192-1024)}, v253")
    a.e(f"v_and_b32 v250, 31, v{lane}")
    a.e(f"v_lshrrev_b32 v251, 5, v{lane}")
    a.e("v_and_b32 v252, 15, v250")
    a.e("v_xor_b32 v252, v252, v251")
    a.e("v_lshlrev_b32 v252, 4, v252")
    a.e("v_lshl_add_u32 v252, v250, 8, v252")
    for s in range(8):
        a.e(f"v_xor_b32 v{KA+s}, {s<<5}, v252")
    a.e("s_lshl_b32 s30, s24, 5")
    a.e("v_add_u32 v253, s30, v250")
    a.e("v_lshlrev_b32 v254, 4, v251")
    a.e(f"v_lshl_add_u32 v{XO}, v253, 11, v254")
    a.e(f"v_bfe_u32 v252, v{lane}, 2, 2")
    a.e(f"v_bfe_u32 v253, v{lane}, 4, 1")
    a.e(f"v_and_b32 v254, 1, v{lane}")
    a.e("v_lshl_add_u32 v253, v253, 1, v254")
    a.e("v_lshl_add_u32 v253, v252, 2, v253")
    a.e("v_lshlrev_b32 v253, 4, v253")
    a.e(f"v_bfe_u32 v254, v{lane}, 1, 1")
    a.e("v_lshl_add_u32 v253, v254, 3, v253")
    a.e("v_lshl_add_u32 v253, v252, 8, v253")
    a.e("v_lshl_add_u32 v253, v251, 11, v253")
    for T in range(4):
        a.e(f"v_xor_b32 v{VA+T}, {T<<6}, v253")
    a.e("v_lshlrev_b32 v255, 10, v251")

    cons = [("W", t) for t in range(16)]
    for g in range(4):
        cons += [("K", 2*g), ("K", 2*g+1), ("V", 2*g), ("V", 2*g+1)]
    issue_order = [("W", 0), ("W", 1), ("W", 2), ("K", 0), ("K", 1)] + [("W", t) for t in range(3, 16)] + \
                  [c for c in cons[16:] if c not in (("K", 0), ("K", 1))]
    assert sorted(issue_order) == sorted(cons)
    slot_of = {}
    dma_id = {}
    x_id = {}
    def issue_tile(tile, slot):
        kind, idx = tile
        slot_of[tile] = slot
        a.e(f"s_add_u32 s30, s29, {slot*SLOT}")
        a.e("s_mov_b32 m0, s30")
        if kind == "W":
            a.e(f"s_add_u32 s31, s26, {idx*64*8192}")
            for i in range(4):
                dma_id[tile] = a.vm(f"buffer_load_dwordx4 v{DW+i}, s[8:11], s31 offen offset:{i*1024} lds")
        elif kind == "K":
            a.e(f"s_add_u32 s31, s27, {idx*16384}")
            for i in range(4):
                dma_id[tile] = a.vm(f"buffer_load_dwordx4 v{DK+i}, s[12:15], s31 offen offset:{i*1024}{NT} lds")
        else:
            a.e(f"s_add_u32 s31, s27, {idx*16384}")
            for i in range(4):
                dma_id[tile] = a.vm(f"buffer_load_dwordx4 v{DV}, s[16:19], s31 offen offset:{i*1024}{NT} lds")
    def issue_x(t):
        a.e(f"s_add_u32 s31, s25, {t*128}")
        base = XF + (t % 3) * 16
        for s in range(4):
            x_id[t] = a.vm(f"buffer_load_dwordx4 {vr(base+4*s,4)}, v{XO}, s[4:7], s31 offen offset:{s*32}")
    issue_tile(("W", 0), 0); issue_x(0)
    issue_tile(("W", 1), 1); issue_x(1)
    issue_tile(("W", 2), 2)
    issue_tile(("K", 0), 3); issue_tile(("K", 1), 4)
    qpos = 5

    def sync(n):
        nonlocal qpos
        tile = cons[n]
        w = dma_id[tile]
        if tile[0] == "W":
            w = max(w, x_id[tile[1]])
        a.wait(vm=w)
        a.e("s_barrier")
        if n >= 1 and qpos < len(issue_order):
            issue_tile(issue_order[qpos], slot_of[cons[n-1]]); qpos += 1
        if tile[0] == "W" and tile[1] + 2 < 16:
            issue_x(tile[1] + 2)

    NBUF = 7
    def run_mfmas(frag_reads, mfmas):
        n = len(mfmas)
        ids = {}
        for i in range(min(NBUF, n)):
            ids[i] = frag_reads[i](AF + 4*(i % 8))
        for i in range(n):
            a.wait(lg=ids[i])
            mfmas[i](AF + 4*(i % 8))
            j = i + NBUF
            if j < n:
                ids[j] = frag_reads[j](AF + 4*(j % 8))

    def lds_base_regs(regs, slot, extra):
        return None

    def compute_W(t):
        slot = slot_of[("W", t)]
        sb = slot * SLOT
        xb = XF + (t % 3) * 16
        reads = []; mf = []
        for s in range(4):
            for T in range(4):
                def rd(buf, s=s, T=T):
                    a.lg(f"ds_read_b64_tr_b16 {vr(buf,2)}, v{VA+T} offset:{sb + s*4096}")
                    return a.lg(f"ds_read_b64_tr_b16 {vr(buf+2,2)}, v{VA+T} offset:{sb + s*4096 + 1024}")
                def mm(buf, s=s, T=T):
                    c = "0" if (t == 0 and s == 0) else vr(ACC+16*T, 16)
                    a.e(f"v_mfma_f32_32x32x16_bf16 {vr(ACC+16*T,16)}, {vr(buf,4)}, {vr(xb+4*s,4)}, {c}")
                reads.append(rd); mf.append(mm)
        run_mfmas(reads, mf)

    cur_shift = {"K": 0, "V": 0}
    def adjust(kind, slot):
        regs = range(KA, KA+8) if kind == "K" else range(VA, VA+4)
        want = 65536 if slot == 4 else 0
        if cur_shift[kind] != want:
            d = want - cur_shift[kind]
            for r in regs:
                a.e(f"v_add_u32 v{r}, {d & 0xffffffff:#x}, v{r}")
            cur_shift[kind] = want
        return slot * SLOT - want

    def compute_K(j):
        slot = slot_of[("K", j)]
        sb = adjust("K", slot)
        jj = j & 1
        reads = []; mf = []
        for s in range(8):
            for ks in range(2):
                def rd(buf, s=s, ks=ks):
                    return a.lg(f"ds_read_b128 {vr(buf,4)}, v{KA+s} offset:{sb + ks*8192}")
                def mm(buf, s=s, ks=ks):
                    d = S + 16*(2*jj+ks)
                    c = "0" if s == 0 else vr(d, 16)
                    a.e(f"v_mfma_f32_32x32x16_bf16 {vr(d,16)}, {vr(buf,4)}, {vr(QF+4*s,4)}, {c}")
                reads.append(rd); mf.append(mm)
        run_mfmas(reads, mf)

    def compute_V(j):
        slot = slot_of[("V", j)]
        sb = adjust("V", slot)
        vv = j & 1
        reads = []; mf = []
        for u in range(4):
            for T in range(4):
                def rd(buf, u=u, T=T):
                    a.lg(f"ds_read_b64_tr_b16 {vr(buf,2)}, v{VA+T} offset:{sb + u*4096}")
                    return a.lg(f"ds_read_b64_tr_b16 {vr(buf+2,2)}, v{VA+T} offset:{sb + u*4096 + 2048}")
                def mm(buf, u=u, T=T):
                    c = "0" if (j == 0 and u == 0) else vr(ACC+16*T, 16)
                    a.e(f"v_mfma_f32_32x32x16_bf16 {vr(ACC+16*T,16)}, {vr(buf,4)}, {vr(PF+4*(4*vv+u),4)}, {c}")
                reads.append(rd); mf.append(mm)
        run_mfmas(reads, mf)

    def softmax(g):
        a.e("s_nop 7"); a.e("s_nop 5")
        for ch in range(4):
            b = S + 16*ch
            a.e(f"v_max3_f32 v{T0+ch}, v{b}, v{b+1}, v{b+2}")
        for k in range(6):
            for ch in range(4):
                b = S + 16*ch
                a.e(f"v_max3_f32 v{T0+ch}, v{T0+ch}, v{b+3+2*k}, v{b+4+2*k}")
        for ch in range(4):
            a.e(f"v_max_f32 v{T0+ch}, v{T0+ch}, v{S+16*ch+15}")
        a.e(f"v_max3_f32 v{T0}, v{T0}, v{T0+1}, v{T0+2}")
        a.e(f"v_max_f32 v{T0}, v{T0}, v{T0+3}")
        a.e(f"v_mov_b32 v{T0+1}, v{T0}")
        a.e("s_nop 1")
        a.e(f"v_permlane32_swap_b32 v{T0}, v{T0+1}")
        a.e("s_nop 1")
        if g == 0:
            a.e(f"v_max_f32 v{M}, v{T0}, v{T0+1}")
        else:
            a.e(f"v_max3_f32 v{T0}, v{T0}, v{T0+1}, v{M}")
            a.e(f"v_sub_f32 v{T0+1}, v{M}, v{T0}")
            a.e(f"v_mul_f32 v{T0+1}, s42, v{T0+1}")
            a.e(f"v_exp_f32 v{T0+1}, v{T0+1}")
            a.e(f"v_mov_b32 v{M}, v{T0}")
            a.e(f"v_mul_f32 v{L}, v{L}, v{T0+1}")
            for r in range(64):
                a.e(f"v_mul_f32 v{ACC+r}, v{ACC+r}, v{T0+1}")
        a.e(f"v_mul_f32 v{T0}, s42, v{M}")
        for blk in range(8):
            b = S + 8*blk
            for r in range(8):
                a.e(f"v_fma_f32 v{b+r}, v{b+r}, s42, -v{T0}")
            for r in range(8):
                a.e(f"v_exp_f32 v{b+r}, v{b+r}")
            if blk == 0:
                for r in range(4):
                    a.e(f"v_add_f32 v{T0+2+r}, v{b+r}, v{b+4+r}")
            else:
                for r in range(8):
                    a.e(f"v_add_f32 v{T0+2+(r&3)}, v{T0+2+(r&3)}, v{b+r}")
            for r in range(4):
                a.e(f"v_cvt_pk_bf16_f32 v{PF+4*blk+r}, v{b+2*r}, v{b+2*r+1}")
        a.e(f"v_add_f32 v{T0+2}, v{T0+2}, v{T0+3}")
        a.e(f"v_add_f32 v{T0+4}, v{T0+4}, v{T0+5}")
        a.e(f"v_add_f32 v{T0+2}, v{T0+2}, v{T0+4}")
        if g == 0:
            a.e(f"v_mov_b32 v{L}, v{T0+2}")
        else:
            a.e(f"v_add_f32 v{L}, v{L}, v{T0+2}")

    for n, tile in enumerate(cons):
        a.c(f"---- step {n} {tile}")
        sync(n)
        kind, idx = tile
        if kind == "W":
            compute_W(idx)
            if idx == 15:
                a.e("s_nop 7"); a.e("s_nop 5")
                for T in range(4):
                    for u in range(2):
                        for r in range(4):
                            a.e(f"v_cvt_pk_bf16_f32 v{QF+4*(2*T+u)+r}, v{ACC+16*T+8*u+2*r}, v{ACC+16*T+8*u+2*r+1}")
                for T in range(4):
                    a.e(f"v_sub_u32 v{VA+T}, v{VA+T}, v255")
        elif kind == "K":
            compute_K(idx)
        else:
            if idx % 2 == 0:
                softmax(idx // 2)
            compute_V(idx)
    a.c("---- epilogue")
    a.e(f"v_mov_b32 v{T0+1}, v{L}")
    a.e("s_nop 1")
    a.e(f"v_permlane32_swap_b32 v{L}, v{T0+1}")
    a.e("s_nop 1")
    a.e(f"v_add_f32 v{L}, v{L}, v{T0+1}")
    a.e(f"v_rcp_f32 v{L}, v{L}")
    a.e(f"v_and_b32 v{T0+2}, 16, v{XO}")
    a.e(f"v_lshrrev_b32 v{T0+3}, 11, v{XO}")
    a.e(f"v_lshl_add_u32 v{XO}, v{T0+3}, 13, v{T0+2}")
    a.e(f"v_cmp_gt_u32 vcc, 112, v{T0+3}")
    a.e("s_nop 7"); a.e("s_nop 3")
    for r in range(64):
        a.e(f"v_mul_f32 v{ACC+r}, v{ACC+r}, v{L}")
    for T in range(4):
        for u in range(2):
            for r in range(4):
                a.e(f"v_cvt_pk_bf16_f32 v{S+4*(2*T+u)+r}, v{ACC+16*T+8*u+2*r}, v{ACC+16*T+8*u+2*r+1}")
    a.e("s_and_saveexec_b64 s[40:41], vcc")
    a.e("s_cbranch_execz L_attn_done")
    for T in range(4):
        for u in range(2):
            a.vm(f"buffer_store_dwordx4 {vr(S+4*(2*T+u),4)}, v{XO}, s[20:23], s28 offen offset:{T*64+u*32}")
    a.label("L_attn_done")
    a.e("s_endpgm")
    return a.text()

def gen_oproj():
    a = Asm()
    ACC = 0
    BF = 32
    AF = 128
    VA = 160
    DW = 162
    XO = 166
    NS = 4; SLOT = 16384
    a.label("oproj_kernel")
    a.e("s_cmp_ge_u32 s2, 256")
    a.e("s_cbranch_scc1 L_oproj_done")
    a.e("s_load_dwordx2 s[44:45], s[0:1], 32")
    a.e("s_load_dwordx2 s[46:47], s[0:1], 72")
    a.e("s_load_dwordx2 s[48:49], s[0:1], 80")
    a.e("s_load_dwordx2 s[50:51], s[0:1], 96")
    a.e("v_lshrrev_b32 v170, 6, v0")
    a.e("v_and_b32 v171, 63, v0")
    a.e("s_nop 0")
    a.e("v_readfirstlane_b32 s24, v170")
    a.e("s_and_b32 s30, s2, 7")
    a.e("s_lshr_b32 s31, s2, 3")
    a.e("s_lshr_b32 s32, s30, 2")
    a.e("s_bfe_u32 s33, s30, 0x10001")
    a.e("s_lshl_b32 s33, s33, 2")
    a.e("s_lshr_b32 s34, s31, 3")
    a.e("s_add_u32 s33, s33, s34")
    a.e("s_and_b32 s34, s30, 1")
    a.e("s_lshl_b32 s34, s34, 3")
    a.e("s_and_b32 s35, s31, 7")
    a.e("s_add_u32 s34, s34, s35")
    a.e("s_mul_i32 s25, s32, 7340032")
    a.e("s_mul_i32 s35, s33, 917504")
    a.e("s_add_u32 s25, s25, s35")
    a.e("s_lshl_b32 s26, s34, 7")
    a.e("s_mul_i32 s28, s33, 458752")
    a.e("s_lshl_b32 s35, s32, 11")
    a.e("s_add_u32 s28, s28, s35")
    a.e("s_add_u32 s28, s28, s26")
    a.e("s_lshl_b32 s29, s24, 12")
    a.e("s_waitcnt lgkmcnt(0)")
    a.e("s_cmp_eq_u32 s32, 0")
    a.e("s_cselect_b32 s8, s44, s46")
    a.e("s_cselect_b32 s9, s45, s47")
    a.e("s_mov_b32 s10, 0x800000"); a.e("s_mov_b32 s11, 0x00020000")
    a.e("s_mov_b32 s4, s50"); a.e("s_mov_b32 s5, s51")
    a.e("s_mov_b32 s6, 14680064"); a.e("s_mov_b32 s7, 0x00020000")
    a.e("s_mov_b32 s20, s48"); a.e("s_mov_b32 s21, s49")
    a.e("s_mov_b32 s22, 3670016"); a.e("s_mov_b32 s23, 0x00020000")
    lane = 171
    a.e(f"v_lshrrev_b32 v172, 3, v{lane}")
    a.e(f"v_and_b32 v173, 7, v{lane}")
    a.e(f"v_bfe_u32 v174, v{lane}, 4, 1")
    a.e("v_lshlrev_b32 v174, 2, v174")
    a.e("v_xor_b32 v173, v173, v174")
    a.e("s_lshl_b32 s30, s24, 16")
    a.e("v_lshlrev_b32 v172, 11, v172")
    a.e("v_add_u32 v172, s30, v172")
    a.e("v_lshl_add_u32 v172, v173, 4, v172")
    for i in range(4):
        a.e(f"v_add_u32 v{DW+i}, {i*(8*2048-1024)}, v172")
    a.e(f"v_lshrrev_b32 v172, 5, v{lane}")
    a.e(f"v_bfe_u32 v173, v{lane}, 2, 2")
    a.e(f"v_bfe_u32 v174, v{lane}, 4, 1")
    a.e(f"v_and_b32 v175, 1, v{lane}")
    a.e("v_lshl_add_u32 v174, v174, 1, v175")
    a.e(f"v_bfe_u32 v175, v{lane}, 3, 1")
    a.e("v_lshl_add_u32 v174, v175, 2, v174")
    a.e("v_lshlrev_b32 v174, 4, v174")
    a.e(f"v_bfe_u32 v175, v{lane}, 1, 1")
    a.e("v_lshl_add_u32 v174, v175, 3, v174")
    a.e("v_lshl_add_u32 v174, v173, 7, v174")
    a.e("v_lshl_add_u32 v174, v172, 10, v174")
    for T in range(2):
        a.e(f"v_xor_b32 v{VA+T}, {T<<6}, v174")
    a.e(f"v_and_b32 v173, 31, v{lane}")
    a.e("s_lshl_b32 s30, s24, 5")
    a.e("v_add_u32 v173, s30, v173")
    a.e("v_lshlrev_b32 v172, 4, v172")
    a.e(f"v_lshl_add_u32 v{XO}, v173, 13, v172")
    a.e("v_lshl_add_u32 v175, v173, 12, v172")
    a.e("v_cmp_gt_u32 vcc, 112, v173")
    a.e("s_nop 1")
    a.e("s_mov_b64 s[40:41], vcc")
    NT_ = 32
    dma_id = {}; b_id = {}
    def issue_tile(t):
        slot = t % NS
        a.e(f"s_add_u32 s30, s29, {slot*SLOT}")
        a.e("s_mov_b32 m0, s30")
        a.e(f"s_add_u32 s31, s26, {t*128*2048}")
        for i in range(4):
            dma_id[t] = a.vm(f"buffer_load_dwordx4 v{DW+i}, s[8:11], s31 offen offset:{i*1024} lds")
    def issue_b(t):
        a.e(f"s_add_u32 s31, s25, {t*256}")
        base = BF + (t % 3) * 32
        for s in range(8):
            b_id[t] = a.vm(f"buffer_load_dwordx4 {vr(base+4*s,4)}, v{XO}, s[4:7], s31 offen offset:{s*32}")
    issue_tile(0); issue_b(0); issue_tile(1); issue_b(1); issue_tile(2)
    NBUF = 7
    for t in range(NT_):
        a.c(f"---- step {t}")
        a.wait(vm=max(dma_id[t], b_id[t]))
        a.e("s_barrier")
        if t + 3 < NT_: issue_tile(t + 3)
        if t + 2 < NT_: issue_b(t + 2)
        sb = (t % NS) * SLOT
        bb = BF + (t % 3) * 32
        items = [(s, T) for s in range(8) for T in range(2)]
        ids = {}
        def rd(i):
            s, T = items[i]; buf = AF + 4*(i % 8)
            a.lg(f"ds_read_b64_tr_b16 {vr(buf,2)}, v{VA+T} offset:{sb + s*2048}")
            ids[i] = a.lg(f"ds_read_b64_tr_b16 {vr(buf+2,2)}, v{VA+T} offset:{sb + s*2048 + 512}")
        for i in range(NBUF): rd(i)
        for i in range(16):
            s, T = items[i]; buf = AF + 4*(i % 8)
            a.wait(lg=ids[i])
            c = "0" if (t == 0 and s == 0) else vr(ACC+16*T, 16)
            a.e(f"v_mfma_f32_32x32x16_bf16 {vr(ACC+16*T,16)}, {vr(buf,4)}, {vr(bb+4*s,4)}, {c}")
            if i + NBUF < 16: rd(i + NBUF)
    a.e("s_nop 7"); a.e("s_nop 5")
    for T in range(2):
        for u in range(2):
            for r in range(4):
                a.e(f"v_cvt_pk_bf16_f32 v{BF+4*(2*T+u)+r}, v{ACC+16*T+8*u+2*r}, v{ACC+16*T+8*u+2*r+1}")
    a.e("s_and_saveexec_b64 s[42:43], s[40:41]")
    a.e("s_cbranch_execz L_oproj_done")
    for T in range(2):
        for u in range(2):
            a.vm(f"buffer_store_dwordx4 {vr(BF+4*(2*T+u),4)}, v175, s[20:23], s28 offen offset:{T*64+u*32}")
    a.label("L_oproj_done")
    a.e("s_endpgm")
    return a.text()

def kd(name, vgpr, sgpr=102):
    return f""".amdhsa_kernel {name}
  .amdhsa_next_free_vgpr {vgpr}
  .amdhsa_next_free_sgpr {sgpr}
  .amdhsa_accum_offset {(vgpr+3)//4*4}
  .amdhsa_group_segment_fixed_size 0
  .amdhsa_kernarg_size 104
  .amdhsa_user_sgpr_count 2
  .amdhsa_user_sgpr_kernarg_segment_ptr 1
  .amdhsa_system_sgpr_workgroup_id_x 1
.end_amdhsa_kernel
"""

hdr = """; fused MHA x2: kernel 1 = Q projection + attention per (block, batch, head); kernel 2 = output projection
; @launch kernel=attn_kernel grid=(512,1,1) block=(256,1,1) lds=81920
; @launch kernel=oproj_kernel grid=(256,1,1) block=(256,1,1) lds=65536
.amdgcn_target "amdgcn-amd-amdhsa--gfx950"
.text
"""
body = hdr
for name, fn in (("attn_kernel", gen_attn), ("oproj_kernel", gen_oproj)):
    body += f".globl {name}\n.p2align 8\n.type {name},@function\n" + fn()
body += '.section .rodata,"a"\n.p2align 6\n' + kd("attn_kernel", 256) + ".p2align 6\n" + kd("oproj_kernel", 176)
open(OUT, "w").write(body)
```

```python
import sys, math, struct

OUT = sys.argv[1] if len(sys.argv) > 1 else "out.s"
OPT = dict(x.split("=") for x in sys.argv[2:])

class Asm:
    def __init__(self):
        self.lines = []
        self.vm_seq = 0
        self.lg_seq = 0
    def e(self, s): self.lines.append("    " + s)
    def label(self, s): self.lines.append(s + ":")
    def c(self, s): self.lines.append("    ; " + s)
    def vm(self, s):
        self.e(s); self.vm_seq += 1
        return self.vm_seq
    def lg(self, s):
        self.e(s); self.lg_seq += 1
        return self.lg_seq
    def wait(self, vm=None, lg=None):
        parts = []
        if vm is not None:
            n = self.vm_seq - vm; assert n >= 0
            parts.append(f"vmcnt({min(n, 63)})")
        if lg is not None:
            n = self.lg_seq - lg; assert n >= 0
            parts.append(f"lgkmcnt({min(n, 15)})")
        self.e("s_waitcnt " + " ".join(parts))
    def text(self): return "\n".join(self.lines) + "\n"
    def stamp(self, idx, srd, vtmp, real=False):
        if not OPT.get("stamp"): return
        if OPT.get("stamp") == "2" and idx not in (0, 11, 12, 13): return
        self.e("s_memrealtime s[70:71]" if real else "s_memtime s[70:71]")
        self.e("s_waitcnt lgkmcnt(0)")
        self.e(f"v_mov_b32 v{vtmp}, s70")
        self.e(f"v_mov_b32 v{vtmp+1}, s72")
        self.vm(f"buffer_store_dword v{vtmp}, v{vtmp+1}, {srd}, 0 offen offset:{idx*4}")

def vr(b, n=1):
    return f"v{b}" if n == 1 else f"v[{b}:{b+n-1}]"

SCALE = 128 ** -0.5
CEXP = SCALE * math.log2(math.e)
def f32bits(x): return "0x%08x" % struct.unpack("<I", struct.pack("<f", x))[0]
NT = " nt"

class Item:
    def __init__(self, pre_read=None, reads=None, pre_mfma=None, mfma=None):
        self.pre_read = pre_read
        self.reads = reads
        self.pre_mfma = pre_mfma
        self.mfma = mfma

def run_pipeline(a, items, AF, NBUF, NRING, fillers=None, per=1):
    n = len(items)
    if fillers is None: fillers = []
    ids = {}
    def issue(j):
        it = items[j]
        if it.pre_read: it.pre_read()
        ids[j] = it.reads(AF + 4 * (j % NRING))
    for j in range(min(NBUF, n)):
        issue(j)
    for i in range(n):
        it = items[i]
        if it.pre_mfma: it.pre_mfma()
        a.wait(lg=ids[i])
        it.mfma(AF + 4 * (i % NRING))
        for _ in range(per):
            if fillers: fillers.pop(0)()
        if i + NBUF < n:
            issue(i + NBUF)

def gen_attn():
    a = Asm()
    ACC = 0
    S = 64
    XS = 64; XB = 96
    QF = 128
    PF = 160
    AF = 192
    KA = 224
    VA = 232
    DK = 236
    DW = 240
    DV = 244
    XO = 245
    M = 246; L = 247
    T0 = 248
    XRA = 160
    XWA = 164
    NBUF = int(OPT.get("nbuf", 6)); NRING = 8

    a.label("attn_kernel")
    a.e("s_cmp_ge_u32 s2, 512")
    a.e("s_cbranch_scc1 L_attn_done")
    a.e("s_load_dwordx8 s[44:51], s[0:1], 0")
    a.e("s_load_dwordx8 s[52:59], s[0:1], 40")
    a.e("s_load_dwordx2 s[60:61], s[0:1], 96")
    a.e("v_lshrrev_b32 v248, 6, v0")
    a.e("v_and_b32 v249, 63, v0")
    a.e("s_nop 0")
    a.e("v_readfirstlane_b32 s24, v248")
    a.e("s_and_b32 s30, s2, 7")
    a.e("s_lshr_b32 s31, s2, 3")
    a.e("s_lshr_b32 s32, s30, 2")
    a.e("s_and_b32 s33, s30, 3")
    a.e("s_lshl_b32 s33, s33, 3")
    a.e("s_and_b32 s34, s31, 7")
    a.e("s_add_u32 s33, s33, s34")
    a.e("s_lshr_b32 s34, s31, 3")
    a.e("s_mul_i32 s25, s34, 229376")
    a.e("s_lshl_b32 s26, s33, 8")
    a.e("s_lshl_b32 s27, s34, 5")
    a.e("s_add_u32 s27, s27, s33")
    a.e("s_lshl_b32 s27, s27, 17")
    a.e("s_lshl_b32 s28, s32, 3")
    a.e("s_add_u32 s28, s28, s34")
    a.e("s_lshl_b32 s28, s28, 2")
    a.e("s_add_u32 s28, s28, s24")
    a.e("s_lshl_b32 s28, s28, 18")
    a.e("s_lshl_b32 s35, s33, 13")
    a.e("s_add_u32 s28, s28, s35")
    a.e("s_lshl_b32 s29, s24, 12")
    a.e("s_lshl_b32 s36, s24, 11")
    a.e(f"s_mov_b32 s42, {f32bits(CEXP)}")
    a.e("s_waitcnt lgkmcnt(0)")
    a.e("s_cmp_eq_u32 s32, 0")
    for d, (sa, sb) in ((4, (44, 52)), (12, (46, 54)), (16, (48, 56)), (8, (50, 58))):
        a.e(f"s_cselect_b32 s{d}, s{sa}, s{sb}")
        a.e(f"s_cselect_b32 s{d+1}, s{sa+1}, s{sb+1}")
    a.e("s_mov_b32 s6, 1835008"); a.e("s_mov_b32 s7, 0x00020000")
    a.e("s_mov_b32 s10, 0x800000"); a.e("s_mov_b32 s11, 0x00020000")
    a.e("s_mov_b32 s14, 0x2000000"); a.e("s_mov_b32 s15, 0x00020000")
    a.e("s_mov_b32 s18, 0x2000000"); a.e("s_mov_b32 s19, 0x00020000")
    a.e("s_mov_b32 s20, s60"); a.e("s_mov_b32 s21, s61")
    a.e("s_mov_b32 s22, 0x1000000"); a.e("s_mov_b32 s23, 0x00020000")
    lane = 249
    if OPT.get("stamp"):
        a.e("s_mov_b32 s64, s60"); a.e("s_mov_b32 s65, s61"); a.e("s_mov_b32 s66, 0x4000000"); a.e("s_mov_b32 s67, 0x00020000")
        a.e("s_lshl_b32 s72, s2, 2"); a.e("s_add_u32 s72, s72, s24"); a.e("s_lshl_b32 s72, s72, 8"); a.e("s_add_u32 s72, s72, 0x2000000")
        a.stamp(0, "s[64:67]", 252)
        a.stamp(12, "s[64:67]", 252, True)
    a.e(f"v_lshrrev_b32 v250, 4, v{lane}")
    a.e(f"v_and_b32 v251, 15, v{lane}")
    a.e("v_xor_b32 v252, v250, v251")
    a.e("v_lshlrev_b32 v253, 8, v250")
    a.e("v_add_u32 v253, s29, v253")
    for i in range(4):
        a.e(f"v_xor_b32 v254, {4*i}, v252")
        a.e(f"v_lshl_add_u32 v{DK+i}, v254, 4, v253")
    a.e("v_lshlrev_b32 v254, 2, v250")
    a.e("v_xor_b32 v254, v254, v251")
    a.e(f"v_lshl_add_u32 v{DV}, v254, 4, v253")
    a.e("s_lshl_b32 s30, s24, 16")
    a.e("v_lshlrev_b32 v253, 13, v250")
    a.e("v_add_u32 v253, s30, v253")
    a.e("v_lshl_add_u32 v253, v254, 4, v253")
    for i in range(2):
        a.e(f"v_add_u32 v{DW+i}, {i*(4*8192-1024)}, v253")
    a.e(f"v_and_b32 v250, 31, v{lane}")
    a.e(f"v_lshrrev_b32 v251, 5, v{lane}")
    a.e("v_and_b32 v252, 15, v250")
    a.e("v_xor_b32 v252, v252, v251")
    a.e("v_lshlrev_b32 v252, 4, v252")
    a.e("v_lshl_add_u32 v252, v250, 8, v252")
    for s in range(8):
        a.e(f"v_xor_b32 v{KA+s}, {s<<5}, v252")
    a.e("v_bfe_u32 v252, v250, 1, 3")
    a.e("v_xor_b32 v252, v252, v251")
    a.e("v_lshlrev_b32 v252, 4, v252")
    a.e("v_lshl_add_u32 v252, v250, 7, v252")
    a.e("s_add_u32 s30, s29, 32768")
    a.e("v_add_u32 v252, s30, v252")
    for s in range(4):
        a.e(f"v_xor_b32 v{XRA+s}, {s<<5}, v252")
    a.e(f"v_lshrrev_b32 v252, 3, v{lane}")
    a.e(f"v_and_b32 v253, 7, v{lane}")
    a.e("s_lshl_b32 s31, s24, 16")
    a.e("v_lshlrev_b32 v254, 11, v252")
    a.e("v_add_u32 v254, s31, v254")
    a.e(f"v_lshl_add_u32 v{XO}, v253, 4, v254")
    a.e(f"v_lshrrev_b32 v254, 4, v{lane}")
    a.e("v_xor_b32 v253, v253, v254")
    a.e("v_lshlrev_b32 v252, 7, v252")
    a.e("v_add_u32 v252, s30, v252")
    for i in range(4):
        a.e(f"v_xor_b32 v254, {(4*i)&7}, v253")
        a.e(f"v_lshl_add_u32 v254, v254, 4, v252")
        a.e(f"v_add_u32 v{XWA+i}, {i*1024}, v254")
    a.e(f"v_bfe_u32 v252, v{lane}, 2, 2")
    a.e(f"v_bfe_u32 v253, v{lane}, 4, 1")
    a.e(f"v_and_b32 v254, 1, v{lane}")
    a.e("v_lshl_add_u32 v253, v253, 1, v254")
    a.e("v_lshl_add_u32 v253, v252, 2, v253")
    a.e("v_lshlrev_b32 v253, 4, v253")
    a.e(f"v_bfe_u32 v254, v{lane}, 1, 1")
    a.e("v_lshl_add_u32 v253, v254, 3, v253")
    a.e("v_lshl_add_u32 v253, v252, 8, v253")
    a.e("v_lshl_add_u32 v253, v251, 11, v253")
    for T in range(4):
        a.e(f"v_xor_b32 v{VA+T}, {T<<6}, v253")
    a.e("v_lshlrev_b32 v255, 10, v251")
    a.e(f"v_lshlrev_b32 v{T0+6}, 4, v{lane}")

    WARM = OPT.get("warm", "1")
    def warm_touch():
        a.e("s_lshr_b32 s30, s2, 3")
        a.e("s_lshl_b32 s30, s30, 2")
        a.e("s_add_u32 s30, s30, s24")
        if "q" in WARM:
            a.e(f"v_lshrrev_b32 v252, 4, v{lane}")
            a.e(f"v_and_b32 v253, 15, v{lane}")
            a.e("v_lshlrev_b32 v253, 7, v253")
            a.e("v_lshl_add_u32 v252, v252, 13, v253")
            a.e("s_lshl_b32 s31, s30, 15")
            a.e("s_and_b32 s37, s2, 3")
            a.e("s_lshl_b32 s37, s37, 11")
            a.e("s_add_u32 s31, s31, s37")
            a.vm(f"buffer_load_dword v{PF+8}, v252, s[8:11], s31 offen")
        if "x" in WARM:
            a.e(f"v_lshlrev_b32 v252, 7, v{lane}")
            a.e("s_lshl_b32 s31, s30, 13")
            a.vm(f"buffer_load_dword v{PF+9}, v252, s[4:7], s31 offen")
        if "o" in WARM:
            a.e("s_load_dwordx2 s[62:63], s[0:1], 32")
            a.e("s_load_dwordx2 s[68:69], s[0:1], 72")
            a.e("s_waitcnt lgkmcnt(0)")
            a.e("s_cmp_eq_u32 s32, 0")
            a.e("s_cselect_b32 s76, s62, s68")
            a.e("s_cselect_b32 s77, s63, s69")
            a.e("s_mov_b32 s78, 0x800000"); a.e("s_mov_b32 s79, 0x00020000")
            a.e(f"v_lshlrev_b32 v252, 7, v{lane}")
            a.e("s_and_b32 s37, s2, 3")
            a.e("s_lshl_b32 s37, s37, 8")
            a.e("s_add_u32 s31, s30, s37")
            a.e("s_lshl_b32 s31, s31, 13")
            a.vm(f"buffer_load_dword v{PF+10}, v252, s[76:79], s31 offen")
    addr_of = {}; dma_id = {}; x_id = {}
    state = {}
    def issue_tile(tile, addr):
        kind, idx = tile
        addr_of[tile] = addr
        if kind == "W":
            a.e(f"s_add_u32 s30, s36, {addr}")
            a.e("s_mov_b32 m0, s30")
            a.e(f"s_add_u32 s31, s26, {idx*32*8192}")
            for i in range(2):
                dma_id[tile] = a.vm(f"buffer_load_dwordx4 v{DW+i}, s[8:11], s31 offen offset:{i*1024} lds")
        else:
            a.e(f"s_add_u32 s30, s29, {addr}")
            a.e("s_mov_b32 m0, s30")
            a.e(f"s_add_u32 s31, s27, {idx*16384}")
            for i in range(4):
                if kind == "K":
                    dma_id[tile] = a.vm(f"buffer_load_dwordx4 v{DK+i}, s[12:15], s31 offen offset:{i*1024}{NT} lds")
                else:
                    dma_id[tile] = a.vm(f"buffer_load_dwordx4 v{DV}, s[16:19], s31 offen offset:{i*1024}{NT} lds")
    def issue_x(t):
        base = XS + (t % 2) * 16
        for i in range(int(OPT.get("nx", 4))):
            a.e(f"s_add_u32 s31, s25, {t*128 + i*16384}")
            x_id[t] = a.vm(f"buffer_load_dwordx4 {vr(base+4*i,4)}, v{XO}, s[4:7], s31 offen")
    def stage_x(t):
        a.wait(vm=x_id[t])
        base = XS + (t % 2) * 16
        for i in range(4):
            a.lg(f"ds_write_b128 v{XWA+i}, {vr(base+4*i,4)}")
        if t + 2 < 16:
            issue_x(t + 2)

    cons = [("W", t) for t in range(32)]
    for g in range(4):
        cons += [("K", 2*g), ("K", 2*g+1), ("V", 2*g), ("V", 2*g+1)]
    if OPT.get("prio"): a.e("s_setprio 2")
    issue_x(0)
    issue_tile(("W", 0), 0); issue_tile(("W", 1), 8192)
    issue_x(1)
    issue_tile(("W", 2), 16384); issue_tile(("W", 3), 24576)
    warm_touch()
    issue_tile(("K", 0), 49152); issue_tile(("K", 1), 65536)
    kvq = [c for c in cons[32:] if c not in (("K", 0), ("K", 1))]
    def sync(n):
        tile = cons[n]
        a.wait(vm=dma_id[tile])
        if not (OPT.get("nobar") and tile[0] == "W"): a.e("s_barrier")
        if n == 0: a.stamp(1, "s[64:67]", 252)
        if n in (4, 8, 12, 16, 20, 24, 28): a.stamp(16 + n // 4, "s[64:67]", 252)
        if tile[0] == "W":
            t = tile[1]
            if 2 <= t and t + 2 < 32:
                if OPT.get("nodma"):
                    addr_of[("W", t + 2)] = addr_of[("W", t - 2)]; dma_id[("W", t + 2)] = dma_id[("W", 3)]
                else:
                    issue_tile(("W", t + 2), addr_of[("W", t - 2)])
            if t == 31:
                issue_tile(kvq.pop(0), 0)
        elif n == 32:
            a.wait(lg=state["lastx"])
            issue_tile(kvq.pop(0), 32768)
        elif n == 33:
            issue_tile(kvq.pop(0), 16384)
        elif kvq:
            issue_tile(kvq.pop(0), addr_of[cons[n-2]])

    cur_shift = {"K": 0, "V": 0}
    def adjust(kind, addr):
        regs = range(KA, KA+8) if kind == "K" else range(VA, VA+4)
        want = 65536 if addr >= 65536 else 0
        if cur_shift[kind] != want:
            d = want - cur_shift[kind]
            for r in regs:
                a.e(f"v_add_u32 v{r}, {d & 0xffffffff:#x}, v{r}")
            cur_shift[kind] = want
        return addr - want

    def softmax(g):
        a.stamp(3+2*g, "s[64:67]", 252)
        if OPT.get("prio"): a.e("s_setprio 0")
        a.e("s_nop 7"); a.e("s_nop 5")
        for ch in range(4):
            b = S + 16*ch
            a.e(f"v_max3_f32 v{T0+ch}, v{b}, v{b+1}, v{b+2}")
        for k in range(6):
            for ch in range(4):
                b = S + 16*ch
                a.e(f"v_max3_f32 v{T0+ch}, v{T0+ch}, v{b+3+2*k}, v{b+4+2*k}")
        for ch in range(4):
            a.e(f"v_max_f32 v{T0+ch}, v{T0+ch}, v{S+16*ch+15}")
        a.e(f"v_max3_f32 v{T0}, v{T0}, v{T0+1}, v{T0+2}")
        a.e(f"v_max_f32 v{T0}, v{T0}, v{T0+3}")
        a.e(f"v_mov_b32 v{T0+1}, v{T0}")
        a.e("s_nop 1")
        a.e(f"v_permlane32_swap_b32 v{T0}, v{T0+1}")
        a.e("s_nop 1")
        if g == 0:
            a.e(f"v_max_f32 v{M}, v{T0}, v{T0+1}")
        else:
            a.e(f"v_max3_f32 v{T0}, v{T0}, v{T0+1}, v{M}")
            a.e(f"v_sub_f32 v{T0+1}, v{M}, v{T0}")
            a.e(f"v_mul_f32 v{T0+1}, s42, v{T0+1}")
            a.e(f"v_exp_f32 v{T0+1}, v{T0+1}")
            a.e(f"v_mov_b32 v{M}, v{T0}")
            a.e(f"v_mul_f32 v{L}, v{L}, v{T0+1}")
            for r in range(64):
                a.e(f"v_mul_f32 v{ACC+r}, v{ACC+r}, v{T0+1}")
        a.e(f"v_mul_f32 v{T0}, s42, v{M}")
        for blk in range(8):
            b = S + 8*blk
            for r in range(8):
                a.e(f"v_fma_f32 v{b+r}, v{b+r}, s42, -v{T0}")
            for r in range(8):
                a.e(f"v_exp_f32 v{b+r}, v{b+r}")
            if blk == 0:
                for r in range(4):
                    a.e(f"v_add_f32 v{T0+2+r}, v{b+r}, v{b+4+r}")
            else:
                for r in range(8):
                    a.e(f"v_add_f32 v{T0+2+(r&3)}, v{T0+2+(r&3)}, v{b+r}")
            for r in range(4):
                a.e(f"v_cvt_pk_bf16_f32 v{PF+4*blk+r}, v{b+2*r}, v{b+2*r+1}")
        a.e(f"v_add_f32 v{T0+2}, v{T0+2}, v{T0+3}")
        a.e(f"v_add_f32 v{T0+4}, v{T0+4}, v{T0+5}")
        a.e(f"v_add_f32 v{T0+2}, v{T0+2}, v{T0+4}")
        if g == 0:
            a.e(f"v_mov_b32 v{L}, v{T0+2}")
        else:
            a.e(f"v_add_f32 v{L}, v{L}, v{T0+2}")

    def qconv():
        a.stamp(2, "s[64:67]", 252)
        a.e("s_nop 7"); a.e("s_nop 5")
        for T in range(4):
            for u in range(2):
                for r in range(4):
                    a.e(f"v_cvt_pk_bf16_f32 v{QF+4*(2*T+u)+r}, v{ACC+16*T+8*u+2*r}, v{ACC+16*T+8*u+2*r+1}")
        a.e("s_nop 1")

    items = []
    for n, tile in enumerate(cons):
        kind, idx = tile
        if kind == "W":
            t = idx // 2; half = idx % 2
            for s2 in range(2):
                for T in range(4):
                    s = 2*half + s2
                    first = (s2 == 0 and T == 0)
                    def pre_read(n=n, first=first, t=t, half=half):
                        if first:
                            if half == 0:
                                stage_x(t)
                            sync(n)
                    def rd(buf, tile=tile, s=s, s2=s2, T=T, t=t):
                        sb = addr_of[tile]
                        if T == 0:
                            state["lastx"] = a.lg(f"ds_read_b128 {vr(XB+(t%2)*16+4*s,4)}, v{XRA+s}")
                        if OPT.get("nord"): return a.lg_seq
                        a.lg(f"ds_read_b64_tr_b16 {vr(buf,2)}, v{VA+T} offset:{sb + s2*4096}")
                        return a.lg(f"ds_read_b64_tr_b16 {vr(buf+2,2)}, v{VA+T} offset:{sb + s2*4096 + 1024}")
                    def mm(buf, idx=idx, s=s, s2=s2, T=T, t=t):
                        c = "0" if (idx == 0 and s2 == 0) else vr(ACC+16*T, 16)
                        a.e(f"v_mfma_f32_32x32x16_bf16 {vr(ACC+16*T,16)}, {vr(buf,4)}, {vr(XB+(t%2)*16+4*s,4)}, {c}")
                    items.append(Item(pre_read, rd, None, mm))
        elif kind == "K":
            jj = idx & 1
            for s in range(8):
                for ks in range(2):
                    first = (s == 0 and ks == 0)
                    def pre_read(n=n, first=first, tile=tile):
                        if first:
                            sync(n)
                            state[tile] = adjust("K", addr_of[tile])
                    def rd(buf, tile=tile, s=s, ks=ks):
                        return a.lg(f"ds_read_b128 {vr(buf,4)}, v{KA+s} offset:{state[tile] + ks*8192}")
                    def pm(idx=idx, first=first):
                        if idx == 0 and first:
                            qconv()
                    def mm(buf, s=s, ks=ks, jj=jj):
                        d = S + 16*(2*jj+ks)
                        c = "0" if s == 0 else vr(d, 16)
                        a.e(f"v_mfma_f32_32x32x16_bf16 {vr(d,16)}, {vr(buf,4)}, {vr(QF+4*s,4)}, {c}")
                    items.append(Item(pre_read, rd, pm, mm))
        else:
            vv = idx & 1
            for u in range(4):
                for T in range(4):
                    first = (u == 0 and T == 0)
                    def pre_read(n=n, first=first, tile=tile, idx=idx):
                        if first:
                            sync(n)
                            if idx == 0:
                                for T_ in range(4):
                                    a.e(f"v_sub_u32 v{VA+T_}, v{VA+T_}, v255")
                            state[tile] = adjust("V", addr_of[tile])
                    def rd(buf, tile=tile, u=u, T=T):
                        sb = state[tile]
                        a.lg(f"ds_read_b64_tr_b16 {vr(buf,2)}, v{VA+T} offset:{sb + u*4096}")
                        return a.lg(f"ds_read_b64_tr_b16 {vr(buf+2,2)}, v{VA+T} offset:{sb + u*4096 + 2048}")
                    def pm(idx=idx, first=first):
                        if first and idx % 2 == 0:
                            softmax(idx // 2)
                            if OPT.get("prio"): a.e("s_setprio 2")
                            a.stamp(4+idx, "s[64:67]", 252)
                            a.e("s_nop 1")
                    def mm(buf, idx=idx, u=u, T=T, vv=vv):
                        c = "0" if (idx == 0 and u == 0) else vr(ACC+16*T, 16)
                        a.e(f"v_mfma_f32_32x32x16_bf16 {vr(ACC+16*T,16)}, {vr(buf,4)}, {vr(PF+4*(4*vv+u),4)}, {c}")
                    items.append(Item(pre_read, rd, pm, mm))
    if OPT.get("qonly"):
        items = items[:256]
    run_pipeline(a, items, AF, NBUF, NRING)

    a.c("---- epilogue")
    a.stamp(11, "s[64:67]", 252)
    a.stamp(13, "s[64:67]", 252, True)
    a.e(f"v_mov_b32 v{T0+1}, v{L}")
    a.e("s_nop 1")
    a.e(f"v_permlane32_swap_b32 v{L}, v{T0+1}")
    a.e("s_nop 1")
    a.e(f"v_add_f32 v{L}, v{L}, v{T0+1}")
    a.e(f"v_rcp_f32 v{L}, v{L}")
    a.e("s_nop 7"); a.e("s_nop 3")
    for r in range(64):
        a.e(f"v_mul_f32 v{ACC+r}, v{ACC+r}, v{L}")
    for T in range(4):
        for u in range(2):
            for r in range(4):
                a.e(f"v_cvt_pk_bf16_f32 v{S+4*(2*T+u)+r}, v{ACC+16*T+8*u+2*r}, v{ACC+16*T+8*u+2*r+1}")
    for T in range(4):
        for u in range(2):
            ks = 2*T + u
            if ks % 4 == 0 and ks > 0:
                a.e("s_add_u32 s28, s28, 4096")
            a.vm(f"buffer_store_dwordx4 {vr(S+4*ks,4)}, v{T0+6}, s[20:23], s28 offen offset:{(ks%4)*1024}")
    a.label("L_attn_done")
    a.e("s_endpgm")
    return a.text()

def gen_oproj():
    a = Asm()
    NSB = int(OPT.get("nsb", 5))
    NS = int(OPT.get("ns2", 8)); SLOT = 16384
    ACC = 0
    AF = 32
    VA = 64
    DW = 68
    XO = 72
    BF = 80
    NBUF = int(OPT.get("nbuf2", 6)); NRING = 8
    a.label("oproj_kernel")
    a.e("s_cmp_ge_u32 s2, 256")
    a.e("s_cbranch_scc1 L_oproj_done")
    a.e("s_load_dwordx2 s[44:45], s[0:1], 32")
    a.e("s_load_dwordx2 s[46:47], s[0:1], 72")
    a.e("s_load_dwordx2 s[48:49], s[0:1], 80")
    a.e("s_load_dwordx2 s[50:51], s[0:1], 96")
    a.e("v_lshrrev_b32 v73, 6, v0")
    a.e("v_and_b32 v74, 63, v0")
    a.e("s_nop 0")
    a.e("v_readfirstlane_b32 s24, v73")
    a.e("s_and_b32 s30, s2, 7")
    a.e("s_lshr_b32 s31, s2, 3")
    a.e("s_lshr_b32 s32, s30, 2")
    a.e("s_bfe_u32 s33, s30, 0x10001")
    a.e("s_lshl_b32 s33, s33, 2")
    a.e("s_lshr_b32 s34, s31, 3")
    a.e("s_add_u32 s33, s33, s34")
    a.e("s_and_b32 s34, s30, 1")
    a.e("s_lshl_b32 s34, s34, 3")
    a.e("s_and_b32 s35, s31, 7")
    a.e("s_add_u32 s34, s34, s35")
    if OPT.get("map2"):
        a.e("s_lshr_b32 s33, s31, 2")
        a.e("s_and_b32 s34, s30, 3")
        a.e("s_lshl_b32 s34, s34, 2")
        a.e("s_and_b32 s35, s31, 3")
        a.e("s_add_u32 s34, s34, s35")
    a.e("s_lshl_b32 s25, s32, 3")
    a.e("s_add_u32 s25, s25, s33")
    a.e("s_lshl_b32 s25, s25, 2")
    a.e("s_add_u32 s25, s25, s24")
    a.e("s_lshl_b32 s25, s25, 18")
    a.e("s_lshl_b32 s26, s34, 7")
    a.e("s_mul_i32 s28, s33, 458752")
    a.e("s_lshl_b32 s35, s32, 11")
    a.e("s_add_u32 s28, s28, s35")
    a.e("s_add_u32 s28, s28, s26")
    a.e("s_lshl_b32 s29, s24, 12")
    a.e("s_mov_b32 s38, -1"); a.e("s_mov_b32 s39, -1")
    a.e("s_cmp_eq_u32 s24, 3")
    a.e("s_cselect_b32 s38, 0xffff, s38")
    a.e("s_cselect_b32 s39, 0xffff, s39")
    a.e("s_waitcnt lgkmcnt(0)")
    a.e("s_cmp_eq_u32 s32, 0")
    a.e("s_cselect_b32 s8, s44, s46")
    a.e("s_cselect_b32 s9, s45, s47")
    a.e("s_mov_b32 s10, 0x800000"); a.e("s_mov_b32 s11, 0x00020000")
    a.e("s_mov_b32 s4, s50"); a.e("s_mov_b32 s5, s51")
    a.e("s_mov_b32 s6, 0x1000000"); a.e("s_mov_b32 s7, 0x00020000")
    a.e("s_mov_b32 s20, s48"); a.e("s_mov_b32 s21, s49")
    a.e("s_mov_b32 s22, 3670016"); a.e("s_mov_b32 s23, 0x00020000")
    lane = 74
    if OPT.get("stamp"):
        a.e("s_mov_b32 s64, s50"); a.e("s_mov_b32 s65, s51"); a.e("s_mov_b32 s66, 0x4000000"); a.e("s_mov_b32 s67, 0x00020000")
        a.e("s_lshl_b32 s72, s2, 2"); a.e("s_add_u32 s72, s72, s24"); a.e("s_lshl_b32 s72, s72, 8"); a.e("s_add_u32 s72, s72, 0x2100000")
        a.stamp(0, "s[64:67]", 75)
        a.stamp(12, "s[64:67]", 75, True)
    a.e(f"v_lshrrev_b32 v75, 3, v{lane}")
    a.e(f"v_and_b32 v76, 7, v{lane}")
    a.e(f"v_bfe_u32 v77, v{lane}, 4, 1")
    a.e("v_lshlrev_b32 v77, 2, v77")
    a.e("v_xor_b32 v76, v76, v77")
    a.e("s_lshl_b32 s30, s24, 16")
    a.e("v_lshlrev_b32 v75, 11, v75")
    a.e("v_add_u32 v75, s30, v75")
    a.e("v_lshl_add_u32 v75, v76, 4, v75")
    for i in range(4):
        a.e(f"v_add_u32 v{DW+i}, {i*(8*2048-1024)}, v75")
    a.e(f"v_lshrrev_b32 v75, 5, v{lane}")
    a.e(f"v_bfe_u32 v76, v{lane}, 2, 2")
    a.e(f"v_bfe_u32 v77, v{lane}, 4, 1")
    a.e(f"v_and_b32 v78, 1, v{lane}")
    a.e("v_lshl_add_u32 v77, v77, 1, v78")
    a.e(f"v_bfe_u32 v78, v{lane}, 3, 1")
    a.e("v_lshl_add_u32 v77, v78, 2, v77")
    a.e("v_lshlrev_b32 v77, 4, v77")
    a.e(f"v_bfe_u32 v78, v{lane}, 1, 1")
    a.e("v_lshl_add_u32 v77, v78, 3, v77")
    a.e("v_lshl_add_u32 v77, v76, 7, v77")
    a.e("v_lshl_add_u32 v77, v75, 10, v77")
    for T in range(2):
        a.e(f"v_xor_b32 v{VA+T}, {T<<6}, v77")
        a.e(f"v_add_u32 v{VA+2+T}, 0x10000, v{VA+T}")
    a.e(f"v_lshlrev_b32 v{XO}, 4, v{lane}")
    a.e(f"v_and_b32 v76, 31, v{lane}")
    a.e("s_lshl_b32 s30, s24, 5")
    a.e("v_add_u32 v76, s30, v76")
    a.e("v_lshlrev_b32 v75, 4, v75")
    a.e("v_lshl_add_u32 v78, v76, 12, v75")
    a.e("v_cmp_gt_u32 vcc, 112, v76")
    a.e("s_nop 1")
    a.e("s_mov_b64 s[40:41], vcc")
    NT_ = 32
    dma_id = {}; b_id = {}
    def issue_tile(t):
        slot = t % NS
        a.e(f"s_add_u32 s30, s29, {slot*SLOT}")
        a.e("s_mov_b32 m0, s30")
        a.e(f"s_add_u32 s31, s26, {t*128*2048}")
        for i in range(4):
            dma_id[t] = a.vm(f"buffer_load_dwordx4 v{DW+i}, s[8:11], s31 offen offset:{i*1024}{' nt' if OPT.get('ntw') else ''} lds")
    def issue_b(t):
        base = BF + (t % NSB) * 32
        a.e("s_mov_b64 exec, s[38:39]")
        for hf in range(2):
            a.e(f"s_add_u32 s31, s25, {t*8192 + hf*4096}")
            for s in range(4):
                b_id[t] = a.vm(f"buffer_load_dwordx4 {vr(base+4*(4*hf+s),4)}, v{XO}, s[4:7], s31 offen offset:{s*1024}{' nt' if OPT.get('nto') else ''}")
        a.e("s_mov_b64 exec, -1")
    fillers = []
    TOUCH = OPT.get("touch")
    def touch(part):
        a.e("s_lshr_b32 s52, s2, 3")
        a.e("s_lshl_b32 s52, s52, 2")
        a.e("s_add_u32 s52, s52, s24")
        a.e("s_lshl_b32 s52, s52, 15")
        a.e("s_and_b32 s53, s2, 3")
        a.e("s_lshl_b32 s53, s53, 9")
        a.e("s_add_u32 s52, s52, s53")
        a.e(f"s_add_u32 s52, s52, {part*2048*2048}")
        a.e(f"v_lshrrev_b32 v75, 2, v{lane}")
        a.e(f"v_and_b32 v76, 3, v{lane}")
        a.e("v_lshlrev_b32 v76, 7, v76")
        a.e("v_lshl_add_u32 v75, v75, 11, v76")
        a.vm(f"buffer_load_dword v79, v75, s[8:11], s52 offen{' nt' if TOUCH == 'nt' else ''}")
    if TOUCH: touch(0)
    def queue_tile(t):
        slot = t % NS
        def mk(i):
            def f():
                if i == 0:
                    a.e(f"s_add_u32 s30, s29, {slot*SLOT}")
                    a.e("s_mov_b32 m0, s30")
                    a.e(f"s_add_u32 s36, s26, {(t % 8 if OPT.get('wrep') else t)*128*2048}")
                dma_id[t] = a.vm(f"buffer_load_dwordx4 v{DW+i}, s[8:11], s36 offen offset:{i*1024}{' nt' if OPT.get('ntw') else ''} lds")
            return f
        for i in range(4): fillers.append(mk(i))
    def queue_b(t):
        base = BF + (t % NSB) * 32
        def mk(j):
            def f():
                hf, s_ = j // 4, j % 4
                if s_ == 0: a.e(f"s_add_u32 s37, s25, {(t % 4 if OPT.get('orep') else t)*8192 + hf*4096}")
                a.e("s_mov_b64 exec, s[38:39]")
                b_id[t] = a.vm(f"buffer_load_dwordx4 {vr(base+4*j,4)}, v{XO}, s[4:7], s37 offen offset:{s_*1024}{' nt' if OPT.get('nto') else ''}")
                a.e("s_mov_b64 exec, -1")
            return f
        for j in range(8): fillers.append(mk(j))
    for t in range(max(NS, NSB - 1)):
        if t < NS: issue_tile(t)
        if t < NSB - 1: issue_b(t)
    items = []
    for t in range(NT_):
        for s in range(8):
            for T in range(2):
                first = (s == 0 and T == 0)
                def pre_read(t=t, first=first):
                    if first:
                        a.c(f"---- step {t}")
                        a.wait(vm=dma_id[t])
                        a.e("s_barrier")
                        if t % 4 == 0: a.stamp(16 + t // 4, "s[64:67]", 75)
                        if TOUCH and t == 4: touch(1)
                        if t >= 2 and t + NS - 2 < NT_: queue_tile(t + NS - 2)
                def rd(buf, t=t, s=s, T=T):
                    sb = (t % NS) * SLOT
                    va = VA + T
                    if sb >= 65536: va += 2; sb -= 65536
                    assert sb < 65536
                    a.lg(f"ds_read_b64_tr_b16 {vr(buf,2)}, v{va} offset:{sb + s*2048}")
                    return a.lg(f"ds_read_b64_tr_b16 {vr(buf+2,2)}, v{va} offset:{sb + s*2048 + 512}")
                def pm(t=t, first=first):
                    if first:
                        a.wait(vm=b_id[t])
                        if t + NSB - 1 < NT_: queue_b(t + NSB - 1)
                def mm(buf, t=t, s=s, T=T):
                    bb = BF + (t % NSB) * 32
                    c = "0" if (t == 0 and s == 0) else vr(ACC+16*T, 16)
                    a.e(f"v_mfma_f32_32x32x16_bf16 {vr(ACC+16*T,16)}, {vr(buf,4)}, {vr(bb+4*s,4)}, {c}")
                items.append(Item(pre_read, rd, pm, mm))
    run_pipeline(a, items, AF, NBUF, NRING, fillers)
    a.stamp(11, "s[64:67]", 75)
    a.stamp(13, "s[64:67]", 75, True)
    a.e("s_nop 7"); a.e("s_nop 5")
    for T in range(2):
        for u in range(2):
            for r in range(4):
                a.e(f"v_cvt_pk_bf16_f32 v{BF+4*(2*T+u)+r}, v{ACC+16*T+8*u+2*r}, v{ACC+16*T+8*u+2*r+1}")
    a.e("s_and_saveexec_b64 s[42:43], s[40:41]")
    a.e("s_cbranch_execz L_oproj_done")
    for T in range(2):
        for u in range(2):
            a.vm(f"buffer_store_dwordx4 {vr(BF+4*(2*T+u),4)}, v78, s[20:23], s28 offen offset:{T*64+u*32}")
    a.label("L_oproj_done")
    a.e("s_endpgm")
    return a.text()

def kd(name, vgpr, sgpr=102):
    return f""".amdhsa_kernel {name}
  .amdhsa_next_free_vgpr {vgpr}
  .amdhsa_next_free_sgpr {sgpr}
  .amdhsa_accum_offset {(vgpr+3)//4*4}
  .amdhsa_group_segment_fixed_size 0
  .amdhsa_kernarg_size 104
  .amdhsa_user_sgpr_count 2
  .amdhsa_user_sgpr_kernarg_segment_ptr 1
  .amdhsa_system_sgpr_workgroup_id_x 1
.end_amdhsa_kernel
"""

LDS2 = 16384 * int(OPT.get("ns2", 8))
hdr = f"""; fused MHA x2: kernel 1 = Q projection + attention per (block, batch, head); kernel 2 = output projection
; @launch kernel=attn_kernel grid=(512,1,1) block=(256,1,1) lds=81920
; @launch kernel=oproj_kernel grid=(256,1,1) block=(256,1,1) lds={LDS2}
.amdgcn_target "amdgcn-amd-amdhsa--gfx950"
.text
"""
body = hdr
for name, fn in (("attn_kernel", gen_attn), ("oproj_kernel", gen_oproj)):
    body += f".globl {name}\n.p2align 8\n.type {name},@function\n" + fn()
body += '.section .rodata,"a"\n.p2align 6\n' + kd("attn_kernel", 256) + ".p2align 6\n" + kd("oproj_kernel", 80 + 32 * int(OPT.get("nsb", 5)))
open(OUT, "w").write(body)
```

```python
import sys, math, struct

OUT = sys.argv[1] if len(sys.argv) > 1 else "out.s"
OPT = dict(x.split("=") for x in sys.argv[2:])

class Asm:
    def __init__(self):
        self.lines = []
        self.vm_seq = 0
        self.lg_seq = 0
    def e(self, s): self.lines.append("    " + s)
    def label(self, s): self.lines.append(s + ":")
    def c(self, s): self.lines.append("    ; " + s)
    def vm(self, s):
        self.e(s); self.vm_seq += 1
        return self.vm_seq
    def lg(self, s):
        self.e(s); self.lg_seq += 1
        return self.lg_seq
    def wait(self, vm=None, lg=None):
        parts = []
        if vm is not None:
            n = self.vm_seq - vm; assert n >= 0
            parts.append(f"vmcnt({min(n, 63)})")
        if lg is not None:
            n = self.lg_seq - lg; assert n >= 0
            parts.append(f"lgkmcnt({min(n, 15)})")
        self.e("s_waitcnt " + " ".join(parts))
    def text(self): return "\n".join(self.lines) + "\n"
    def stamp(self, idx, srd, vtmp, real=False):
        if not OPT.get("stamp"): return
        if OPT.get("stamp") == "2" and idx not in (0, 11, 12, 13): return
        self.e("s_memrealtime s[70:71]" if real else "s_memtime s[70:71]")
        self.e("s_waitcnt lgkmcnt(0)")
        self.e(f"v_mov_b32 v{vtmp}, s70")
        self.e(f"v_mov_b32 v{vtmp+1}, s72")
        self.vm(f"buffer_store_dword v{vtmp}, v{vtmp+1}, {srd}, 0 offen offset:{idx*4}")

def vr(b, n=1):
    return f"v{b}" if n == 1 else f"v[{b}:{b+n-1}]"

SCALE = 128 ** -0.5
CEXP = SCALE * math.log2(math.e)
def f32bits(x): return "0x%08x" % struct.unpack("<I", struct.pack("<f", x))[0]
NT = " nt"

WAITG = int(OPT.get("waitg", 2))
class Item:
    def __init__(self, pre_read=None, reads=None, pre_mfma=None, mfma=None):
        self.pre_read = pre_read
        self.reads = reads
        self.pre_mfma = pre_mfma
        self.mfma = mfma

def run_pipeline(a, items, AF, NBUF, NRING, fillers=None, per=1):
    n = len(items)
    if fillers is None: fillers = []
    ids = {}
    def issue(j):
        it = items[j]
        if it.pre_read: it.pre_read()
        ids[j] = it.reads(AF + 4 * (j % NRING))
    for j in range(min(NBUF, n)):
        issue(j)
    for i in range(n):
        it = items[i]
        if it.pre_mfma: it.pre_mfma()
        if i % WAITG == 0:
            a.wait(lg=ids[min(i + WAITG - 1, n - 1)])
        it.mfma(AF + 4 * (i % NRING))
        for _ in range(per):
            if fillers: fillers.pop(0)()
        if i + NBUF < n:
            issue(i + NBUF)

def gen_attn():
    a = Asm()
    ACC = 0
    S = 64
    QF = 128
    PF = 160
    AF = 192
    NXS = int(OPT.get("nxs", 3))
    XS = 64
    XB = 112
    KVPS = [64, 80, 96, 160]
    KA = 224
    VA = 232
    DK = 236
    DV = 240
    HI1K = 241; LANE16 = 242
    M = 243; L = 244
    T0 = 245
    DW = 224
    XO = 228
    LANE = 251
    WRA = 254
    XRA = 243
    VA2 = 247
    TMP = 192
    NBUF = int(OPT.get("nbuf", 6)); NRING = 7
    UB = 81920
    WSLOT = [0, 16384, UB, UB + 16384]
    XL = 32768
    NPRE = int(OPT.get("npre", 4))

    a.label("attn_kernel")
    a.e("s_cmp_ge_u32 s2, 256")
    a.e("s_cbranch_scc1 L_attn_done")
    a.e("s_load_dwordx8 s[44:51], s[0:1], 0")
    a.e("s_load_dwordx8 s[52:59], s[0:1], 40")
    a.e("s_load_dwordx2 s[60:61], s[0:1], 96")
    a.e("s_load_dwordx2 s[62:63], s[0:1], 32")
    a.e("s_load_dwordx2 s[68:69], s[0:1], 72")
    lane = LANE
    a.e(f"v_lshrrev_b32 v{TMP}, 6, v0")
    a.e(f"v_and_b32 v{lane}, 63, v0")
    a.e("s_nop 0")
    a.e(f"v_readfirstlane_b32 s40, v{TMP}")
    a.e("s_nop 3")
    a.e("s_lshr_b32 s41, s40, 2")
    a.e("s_and_b32 s24, s40, 3")
    a.e("s_and_b32 s30, s2, 7")
    a.e("s_lshr_b32 s31, s2, 3")
    a.e("s_lshr_b32 s32, s30, 2")
    a.e("s_and_b32 s33, s30, 3")
    a.e("s_lshl_b32 s33, s33, 3")
    a.e("s_and_b32 s34, s31, 7")
    a.e("s_add_u32 s33, s33, s34")
    a.e("s_lshr_b32 s34, s31, 3")
    a.e("s_lshl_b32 s34, s34, 1")
    a.e("s_add_u32 s34, s34, s41")
    a.e("s_mul_i32 s25, s34, 229376")
    a.e("s_lshl_b32 s26, s33, 8")
    a.e("s_lshl_b32 s27, s34, 5")
    a.e("s_add_u32 s27, s27, s33")
    a.e("s_lshl_b32 s27, s27, 17")
    a.e("s_lshl_b32 s28, s32, 3")
    a.e("s_add_u32 s28, s28, s34")
    a.e("s_lshl_b32 s28, s28, 2")
    a.e("s_add_u32 s28, s28, s24")
    a.e("s_lshl_b32 s28, s28, 18")
    a.e("s_lshl_b32 s35, s33, 13")
    a.e("s_add_u32 s28, s28, s35")
    a.e("s_lshl_b32 s80, s24, 12")
    a.e(f"s_mul_i32 s81, s41, {UB}")
    a.e("s_add_u32 s29, s80, s81")
    a.e("s_lshl_b32 s36, s40, 11")
    a.e(f"s_mov_b32 s42, {f32bits(CEXP)}")
    a.e("s_add_u32 s43, s33, s34")
    a.e("s_and_b32 s43, s43, 7")
    a.e("s_lshl_b32 s43, s43, 1" if OPT.get("rot") else "s_mov_b32 s43, 0")
    a.e("s_mov_b32 s38, -1"); a.e("s_mov_b32 s39, -1")
    a.e("s_cmp_eq_u32 s24, 3")
    a.e("s_cselect_b32 s38, 0, s38")
    a.e("s_cselect_b32 s39, 0, s39")
    a.e("s_waitcnt lgkmcnt(0)")
    a.e("s_cmp_eq_u32 s32, 0")
    for d, (sa, sb) in ((4, (44, 52)), (12, (46, 54)), (16, (48, 56)), (8, (50, 58)), (76, (62, 68))):
        a.e(f"s_cselect_b32 s{d}, s{sa}, s{sb}")
        a.e(f"s_cselect_b32 s{d+1}, s{sa+1}, s{sb+1}")
    a.e("s_mov_b32 s6, 1835008"); a.e("s_mov_b32 s7, 0x00020000")
    a.e("s_mov_b32 s10, 0x800000"); a.e("s_mov_b32 s11, 0x00020000")
    a.e("s_mov_b32 s14, 0x2000000"); a.e("s_mov_b32 s15, 0x00020000")
    a.e("s_mov_b32 s18, 0x2000000"); a.e("s_mov_b32 s19, 0x00020000")
    a.e("s_mov_b32 s20, s60"); a.e("s_mov_b32 s21, s61")
    a.e("s_mov_b32 s22, 0x1000000"); a.e("s_mov_b32 s23, 0x00020000")
    a.e("s_mov_b32 s78, 0x800000"); a.e("s_mov_b32 s79, 0x00020000")
    if OPT.get("stamp"):
        a.e("s_mov_b32 s64, s60"); a.e("s_mov_b32 s65, s61"); a.e("s_mov_b32 s66, 0x4000000"); a.e("s_mov_b32 s67, 0x00020000")
        a.e("s_lshl_b32 s72, s2, 3"); a.e("s_add_u32 s72, s72, s40"); a.e("s_lshl_b32 s72, s72, 8"); a.e("s_add_u32 s72, s72, 0x2000000")
        a.stamp(0, "s[64:67]", 222)
        a.stamp(12, "s[64:67]", 222, True)
    t0, t1, t2, t3, t4 = TMP, TMP+1, TMP+2, TMP+3, TMP+4
    a.e(f"v_lshrrev_b32 v{t0}, 4, v{lane}")
    a.e(f"v_and_b32 v{t1}, 15, v{lane}")
    a.e(f"v_xor_b32 v{t2}, v{t0}, v{t1}")
    a.e(f"v_lshlrev_b32 v{t3}, 8, v{t0}")
    a.e(f"v_add_u32 v{t3}, s80, v{t3}")
    for i in range(4):
        a.e(f"v_xor_b32 v{t4}, {4*i}, v{t2}")
        a.e(f"v_lshl_add_u32 v{DK+i}, v{t4}, 4, v{t3}")
    a.e(f"v_lshlrev_b32 v{t4}, 2, v{t0}")
    a.e(f"v_xor_b32 v{t4}, v{t4}, v{t1}")
    a.e(f"v_lshl_add_u32 v{DV}, v{t4}, 4, v{t3}")
    a.e("s_lshl_b32 s30, s40, 16")
    a.e(f"v_lshlrev_b32 v{t3}, 13, v{t0}")
    a.e(f"v_add_u32 v{t3}, s30, v{t3}")
    a.e(f"v_lshl_add_u32 v{t3}, v{t4}, 4, v{t3}")
    for i in range(2):
        a.e(f"v_add_u32 v{DW+i}, {i*(4*8192-1024)}, v{t3}")
    a.e(f"v_and_b32 v{t0}, 31, v{lane}")
    a.e(f"v_lshrrev_b32 v{t1}, 5, v{lane}")
    a.e(f"v_bfe_u32 v{t2}, v{t0}, 1, 3")
    a.e(f"v_xor_b32 v{t2}, v{t2}, v{t1}")
    a.e(f"v_lshlrev_b32 v{t2}, 4, v{t2}")
    a.e(f"v_lshl_add_u32 v{t2}, v{t0}, 7, v{t2}")
    a.e(f"s_add_u32 s30, s29, {XL}")
    a.e(f"v_add_u32 v{t2}, s30, v{t2}")
    for s_ in range(4):
        a.e(f"v_xor_b32 v{XRA+s_}, {s_<<5}, v{t2}")
    a.e(f"v_lshrrev_b32 v{t2}, 3, v{lane}")
    a.e(f"v_and_b32 v{t3}, 7, v{lane}")
    a.e("s_lshl_b32 s31, s24, 16")
    a.e(f"v_lshlrev_b32 v{t2}, 11, v{t2}")
    a.e(f"v_add_u32 v{t2}, s31, v{t2}")
    a.e(f"v_lshrrev_b32 v{t4}, 4, v{lane}")
    a.e(f"v_xor_b32 v{t3}, v{t3}, v{t4}")
    for i in range(4):
        a.e(f"v_xor_b32 v{t4}, {(4*i)&7}, v{t3}")
        a.e(f"v_lshl_add_u32 v{t4}, v{t4}, 4, v{t2}")
        a.e(f"v_add_u32 v{XO+i}, {i*(16384-1024)}, v{t4}")
    a.e(f"v_bfe_u32 v{t2}, v{lane}, 2, 2")
    a.e(f"v_bfe_u32 v{t3}, v{lane}, 4, 1")
    a.e(f"v_and_b32 v{t4}, 1, v{lane}")
    a.e(f"v_lshl_add_u32 v{t3}, v{t3}, 1, v{t4}")
    a.e(f"v_lshl_add_u32 v{t3}, v{t2}, 2, v{t3}")
    a.e(f"v_lshlrev_b32 v{t3}, 4, v{t3}")
    a.e(f"v_bfe_u32 v{t4}, v{lane}, 1, 1")
    a.e(f"v_lshl_add_u32 v{t3}, v{t4}, 3, v{t3}")
    a.e(f"v_lshl_add_u32 v{t3}, v{t2}, 8, v{t3}")
    a.e(f"v_lshl_add_u32 v{t3}, v{t1}, 11, v{t3}")
    for T in range(4):
        a.e(f"v_xor_b32 v{VA+T}, {T<<6}, v{t3}")
        a.e(f"v_add_u32 v{VA2+T}, 0x10000, v{VA+T}")
    a.e(f"v_lshlrev_b32 v{HI1K}, 10, v{t1}")
    a.e(f"v_subrev_u32 v{HI1K}, s81, v{HI1K}")
    a.e(f"v_lshlrev_b32 v{LANE16}, 4, v{lane}")
    a.e(f"v_add_u32 v{WRA}, s29, v{LANE16}")

    def make_ka():
        u0, u1, u2 = 252, 253, 255
        a.e(f"v_and_b32 v{u0}, 31, v{lane}")
        a.e(f"v_lshrrev_b32 v{u1}, 5, v{lane}")
        a.e(f"v_and_b32 v{u2}, 15, v{u0}")
        a.e(f"v_xor_b32 v{u2}, v{u2}, v{u1}")
        a.e(f"v_lshlrev_b32 v{u2}, 4, v{u2}")
        a.e(f"v_lshl_add_u32 v{u2}, v{u0}, 8, v{u2}")
        a.e(f"v_add_u32 v{u2}, s81, v{u2}")
        for s_ in range(8):
            a.e(f"v_xor_b32 v{KA+s_}, {s_<<5}, v{u2}")
    addr_of = {}; dma_id = {}; x_id = {}; state = {}
    fillers = []
    def now_or_later(fs, later):
        for f in fs:
            if later: fillers.append(f)
            else: f()
    def flush_until(cond):
        while not cond():
            fillers.pop(0)()
    NTQ = " nt" if OPT.get("ntq") else ""
    def issue_tile(tile, addr, later=False):
        kind, idx = tile
        addr_of[tile] = addr
        fs = []
        if kind == "W":
            def f():
                a.e(f"s_add_u32 m0, s36, {addr}")
                a.e(f"s_add_u32 s31, s26, {idx*64*8192}")
                for i in range(2):
                    dma_id[tile] = a.vm(f"buffer_load_dwordx4 v{DW+i}, s[8:11], s31 offen offset:{i*1024}{NTQ} lds")
            fs.append(f)
        else:
            for p in range(2):
                def f(p=p):
                    a.e(f"s_add_u32 m0, s29, {addr}")
                    a.e(f"s_add_u32 s31, s27, {idx*16384}")
                    for i in (2*p, 2*p+1):
                        if kind == "K":
                            r = a.vm(f"buffer_load_dwordx4 v{DK+i}, s[12:15], s31 offen offset:{i*1024}{NT} lds")
                        else:
                            r = a.vm(f"buffer_load_dwordx4 v{DV}, s[16:19], s31 offen offset:{i*1024}{NT} lds")
                    if p == 1: dma_id[tile] = r
                fs.append(f)
        now_or_later(fs, later)
    pre_id = {}
    def issue_pre1(tile, slot, i):
        kind, idx = tile
        a.e(f"s_add_u32 s31, s27, {idx*16384}")
        if slot < 0:
            a.e(f"s_add_u32 m0, s29, 65536")
            addr_of[tile] = 65536
            r = a.vm(f"buffer_load_dwordx4 v{DK+i}, s[12:15], s31 offen offset:{i*1024}{NT} lds")
            if i == 3: dma_id[tile] = r
            return
        d = vr(KVPS[slot] + 4*i, 4)
        if kind == "K":
            r = a.vm(f"buffer_load_dwordx4 {d}, v{DK+i}, s[12:15], s31 offen offset:{i*1024}{NT}")
        else:
            r = a.vm(f"buffer_load_dwordx4 {d}, v{DV}, s[16:19], s31 offen offset:{i*1024}{NT}")
        if i == 3: pre_id[tile] = r
    def spill_pre(tile, slot, addr):
        addr_of[tile] = addr
        flush_until(lambda: tile in pre_id)
        a.wait(vm=pre_id[tile])
        wr = WRA; ad = addr
        if addr >= 65536:
            a.e(f"v_add_u32 v255, 0x10000, v{WRA}"); wr = 255; ad -= 65536
        for i in range(4):
            state["prew", tile] = a.lg(f"ds_write_b128 v{wr}, {vr(KVPS[slot] + 4*i, 4)} offset:{ad + i*1024}")
    def issue_x(t, later=False):
        fs = []
        for p in range(2):
            def f(p=p):
                if p == 0 and ("xr", t - 3) in state:
                    a.wait(lg=state["xr", t - 3])
                a.e(f"s_add_u32 m0, s29, {XL + (t%3)*16384}")
                a.e(f"s_add_u32 s37, s25, {t*128}")
                if p == 1: a.e("s_mov_b64 exec, s[38:39]")
                for i in (2*p, 2*p+1):
                    r = a.vm(f"buffer_load_dwordx4 v{XO+i}, s[4:7], s37 offen offset:{i*1024}{NTQ} lds")
                if p == 1:
                    a.e("s_mov_b64 exec, -1")
                    x_id[t] = r
            fs.append(f)
        now_or_later(fs, later)

    cons = [("W", t) for t in range(16)]
    for g in range(4):
        cons += [("K", 2*g), ("K", 2*g+1), ("V", 2*g), ("V", 2*g+1)]
    kv_all = cons[16:]
    pre_tiles = kv_all[:NPRE]
    kvq = kv_all[NPRE:]
    issue_x(0)
    issue_tile(("W", 0), WSLOT[0])
    issue_x(1)
    issue_tile(("W", 1), WSLOT[1])
    issue_x(2)
    for t in range(2, 4): issue_tile(("W", t), WSLOT[t])
    PRE_AT = int(OPT.get("preat", 1))
    pre_left = list(enumerate(pre_tiles))
    PRE_RATE = int(OPT.get("prerate", 1))
    pre_q = []
    for sl, tl in enumerate(pre_tiles):
        pre_q += [(lambda tl=tl, sl=sl, i=i: issue_pre1(tl, sl, i)) for i in range(4)]
    def fill_region(addr):
        if pre_left:
            i, tl = pre_left.pop(0)
            spill_pre(tl, i, addr)
        elif kvq:
            issue_tile(kvq.pop(0), addr, True)
    def sync(n):
        tile = cons[n]
        drain = n <= 16
        if tile in pre_tiles:
            a.wait(lg=a.lg_seq if drain else state["prew", tile])
        else:
            flush_until(lambda: tile in dma_id)
            w = dma_id[tile]
            if tile[0] == "W":
                flush_until(lambda: n in x_id)
                w = max(w, x_id[n])
            a.wait(vm=w, lg=a.lg_seq if drain else None)
        a.e("s_barrier")
        if n == 0: a.stamp(1, "s[64:67]", 222)
        if n in (2, 4, 6, 8, 10, 12, 14): a.stamp(16 + n // 2, "s[64:67]", 222)
        if 1 <= n <= 12:
            issue_tile(("W", n + 3), addr_of[cons[n-1]], True)
        if n >= PRE_AT:
            for _ in range(PRE_RATE if n < 12 else 99):
                if pre_q:
                    if _ : fillers.extend([lambda: None] * 4)
                    fillers.append(pre_q.pop(0))
        if n == 14: fill_region(XL + 16384)
        if n == 15: fill_region(XL + 32768)
        if n == 16:
            fill_region(XL); fill_region(0); fill_region(16384)
        if n >= 18: fill_region(addr_of[cons[n-2]])

    cur_shift = {"K": 0, "V": 0}
    def adjust(kind, addr):
        regs = range(KA, KA+8) if kind == "K" else range(VA, VA+4)
        want = 65536 if addr >= 65536 else 0
        if cur_shift[kind] != want:
            d = want - cur_shift[kind]
            for r in regs:
                a.e(f"v_add_u32 v{r}, {d & 0xffffffff:#x}, v{r}")
            cur_shift[kind] = want
        return addr - want

    def softmax(g):
        a.stamp(3+2*g, "s[64:67]", 222)
        if OPT.get("prio") == "1": a.e("s_setprio 0")
        a.e("s_nop 7"); a.e("s_nop 5")
        for ch in range(4):
            b = S + 16*ch
            a.e(f"v_max3_f32 v{T0+ch}, v{b}, v{b+1}, v{b+2}")
        for k in range(6):
            for ch in range(4):
                b = S + 16*ch
                a.e(f"v_max3_f32 v{T0+ch}, v{T0+ch}, v{b+3+2*k}, v{b+4+2*k}")
        for ch in range(4):
            a.e(f"v_max_f32 v{T0+ch}, v{T0+ch}, v{S+16*ch+15}")
        a.e(f"v_max3_f32 v{T0}, v{T0}, v{T0+1}, v{T0+2}")
        a.e(f"v_max_f32 v{T0}, v{T0}, v{T0+3}")
        a.e(f"v_mov_b32 v{T0+1}, v{T0}")
        a.e("s_nop 1")
        a.e(f"v_permlane32_swap_b32 v{T0}, v{T0+1}")
        a.e("s_nop 1")
        if g == 0:
            a.e(f"v_max_f32 v{M}, v{T0}, v{T0+1}")
        else:
            a.e(f"v_max3_f32 v{T0}, v{T0}, v{T0+1}, v{M}")
            a.e(f"v_sub_f32 v{T0+1}, v{M}, v{T0}")
            a.e(f"v_mul_f32 v{T0+1}, s42, v{T0+1}")
            a.e(f"v_exp_f32 v{T0+1}, v{T0+1}")
            a.e(f"v_mov_b32 v{M}, v{T0}")
            a.e(f"v_mul_f32 v{L}, v{L}, v{T0+1}")
            for r in range(64):
                a.e(f"v_mul_f32 v{ACC+r}, v{ACC+r}, v{T0+1}")
                if r % 16 == 15 and fillers: fillers.pop(0)()
        a.e(f"v_mul_f32 v{T0}, s42, v{M}")
        for blk in range(8):
            b = S + 8*blk
            for r in range(8):
                a.e(f"v_fma_f32 v{b+r}, v{b+r}, s42, -v{T0}")
            for r in range(8):
                a.e(f"v_exp_f32 v{b+r}, v{b+r}")
            if fillers: fillers.pop(0)()
            if blk == 0:
                for r in range(4):
                    a.e(f"v_add_f32 v{T0+2+r}, v{b+r}, v{b+4+r}")
            else:
                for r in range(8):
                    a.e(f"v_add_f32 v{T0+2+(r&3)}, v{T0+2+(r&3)}, v{b+r}")
            for r in range(4):
                a.e(f"v_cvt_pk_bf16_f32 v{PF+4*blk+r}, v{b+2*r}, v{b+2*r+1}")
        a.e(f"v_add_f32 v{T0+2}, v{T0+2}, v{T0+3}")
        a.e(f"v_add_f32 v{T0+4}, v{T0+4}, v{T0+5}")
        a.e(f"v_add_f32 v{T0+2}, v{T0+2}, v{T0+4}")
        if g == 0:
            a.e(f"v_mov_b32 v{L}, v{T0+2}")
        else:
            a.e(f"v_add_f32 v{L}, v{L}, v{T0+2}")

    def qconv():
        a.stamp(2, "s[64:67]", 222)
        if OPT.get("prio") == "2": a.e("s_setprio 0")
        a.e("s_nop 7"); a.e("s_nop 5")
        for T in range(4):
            for u in range(2):
                for r in range(4):
                    a.e(f"v_cvt_pk_bf16_f32 v{QF+4*(2*T+u)+r}, v{ACC+16*T+8*u+2*r}, v{ACC+16*T+8*u+2*r+1}")
        a.e("s_nop 1")

    items = []
    for n, tile in enumerate(cons):
        kind, idx = tile
        if kind == "W":
            t = idx
            for s in range(4):
                for T in range(4):
                    first = (s == 0 and T == 0)
                    def pre_read(n=n, first=first, t=t):
                        if first:
                            sync(n)
                    def rd(buf, tile=tile, s=s, T=T, t=t):
                        sb = addr_of[tile]
                        if s == 0:
                            state["xr", t] = a.lg(f"ds_read_b128 {vr(XB+(t%2)*16+4*T,4)}, v{XRA+T} offset:{(t%3)*16384}")
                        if s == 2 and T == 0 and t + 3 < 16: issue_x(t + 3, True)
                        va = VA + T
                        if sb >= 65536: va = VA2 + T; sb -= 65536
                        a.lg(f"ds_read_b64_tr_b16 {vr(buf,2)}, v{va} offset:{sb + s*4096}")
                        return a.lg(f"ds_read_b64_tr_b16 {vr(buf+2,2)}, v{va} offset:{sb + s*4096 + 1024}")
                    def mm(buf, idx=idx, s=s, T=T, t=t):
                        c = "0" if (idx == 0 and s == 0) else vr(ACC+16*T, 16)
                        a.e(f"v_mfma_f32_32x32x16_bf16 {vr(ACC+16*T,16)}, {vr(buf,4)}, {vr(XB+(t%2)*16+4*s,4)}, {c}")
                    items.append(Item(pre_read, rd, None, mm))
        elif kind == "K":
            jj = idx & 1
            for s in range(8):
                for ks in range(2):
                    first = (s == 0 and ks == 0)
                    def pre_read(n=n, first=first, tile=tile):
                        if first:
                            sync(n)
                            if tile == ("K", 0):
                                flush_until(lambda: not fillers)
                                make_ka()
                            state[tile] = adjust("K", addr_of[tile])
                    def rd(buf, tile=tile, s=s, ks=ks):
                        return a.lg(f"ds_read_b128 {vr(buf,4)}, v{KA+s} offset:{state[tile] + ks*8192}")
                    def pm(idx=idx, first=first):
                        if idx == 0 and first:
                            qconv()
                    def mm(buf, s=s, ks=ks, jj=jj):
                        d = S + 16*(2*jj+ks)
                        c = "0" if s == 0 else vr(d, 16)
                        a.e(f"v_mfma_f32_32x32x16_bf16 {vr(d,16)}, {vr(buf,4)}, {vr(QF+4*s,4)}, {c}")
                    items.append(Item(pre_read, rd, pm, mm))
        else:
            vv = idx & 1
            for u in range(4):
                for T in range(4):
                    first = (u == 0 and T == 0)
                    def pre_read(n=n, first=first, tile=tile, idx=idx):
                        if first:
                            sync(n)
                            if idx == 0:
                                for T_ in range(4):
                                    a.e(f"v_sub_u32 v{VA+T_}, v{VA+T_}, v{HI1K}")
                            state[tile] = adjust("V", addr_of[tile])
                    def rd(buf, tile=tile, u=u, T=T):
                        sb = state[tile]
                        a.lg(f"ds_read_b64_tr_b16 {vr(buf,2)}, v{VA+T} offset:{sb + u*4096}")
                        return a.lg(f"ds_read_b64_tr_b16 {vr(buf+2,2)}, v{VA+T} offset:{sb + u*4096 + 2048}")
                    def pm(idx=idx, first=first):
                        if first and idx % 2 == 0:
                            softmax(idx // 2)
                            if OPT.get("prio") == "1": a.e("s_setprio 2")
                            a.stamp(4+idx, "s[64:67]", 222)
                            a.e("s_nop 1")
                    def mm(buf, idx=idx, u=u, T=T, vv=vv):
                        c = "0" if (idx == 0 and u == 0) else vr(ACC+16*T, 16)
                        a.e(f"v_mfma_f32_32x32x16_bf16 {vr(ACC+16*T,16)}, {vr(buf,4)}, {vr(PF+4*(4*vv+u),4)}, {c}")
                    items.append(Item(pre_read, rd, pm, mm))
    run_pipeline(a, items, AF, NBUF, NRING, fillers)
    assert not fillers

    a.c("---- epilogue")
    a.stamp(11, "s[64:67]", 222)
    a.stamp(13, "s[64:67]", 222, True)
    a.e(f"v_mov_b32 v{T0+1}, v{L}")
    a.e("s_nop 1")
    a.e(f"v_permlane32_swap_b32 v{L}, v{T0+1}")
    a.e("s_nop 1")
    a.e(f"v_add_f32 v{L}, v{L}, v{T0+1}")
    a.e(f"v_rcp_f32 v{L}, v{L}")
    a.e("s_nop 7"); a.e("s_nop 3")
    for r in range(64):
        a.e(f"v_mul_f32 v{ACC+r}, v{ACC+r}, v{L}")
    for T in range(4):
        for u in range(2):
            for r in range(4):
                a.e(f"v_cvt_pk_bf16_f32 v{S+4*(2*T+u)+r}, v{ACC+16*T+8*u+2*r}, v{ACC+16*T+8*u+2*r+1}")
    for T in range(4):
        for u in range(2):
            ks = 2*T + u
            if ks % 4 == 0 and ks > 0:
                a.e("s_add_u32 s28, s28, 4096")
            a.vm(f"buffer_store_dwordx4 {vr(S+4*ks,4)}, v{LANE16}, s[20:23], s28 offen offset:{(ks%4)*1024}")
    if OPT.get("wend", "1") == "1":
        a.e("s_lshr_b32 s30, s2, 3")
        a.e("s_lshl_b32 s30, s30, 3")
        a.e("s_add_u32 s30, s30, s40")
        a.e(f"v_lshlrev_b32 v{T0}, 3, v{LANE16}")
        a.e("s_and_b32 s37, s2, 3")
        a.e("s_lshl_b32 s37, s37, 8")
        a.e("s_add_u32 s31, s30, s37")
        a.e("s_lshl_b32 s31, s31, 13")
        a.vm(f"buffer_load_dword v{T0+1}, v{T0}, s[76:79], s31 offen")
    a.label("L_attn_done")
    a.e("s_endpgm")
    return a.text()

def gen_oproj():
    a = Asm()
    NSB = int(OPT.get("nsb", 5))
    NS = int(OPT.get("ns2", 8)); SLOT = 16384
    ACC = 0
    AF = 32
    VA = 64
    DW = 68
    XO = 72
    BF = 80
    NBUF = int(OPT.get("nbuf2", 6)); NRING = 8
    a.label("oproj_kernel")
    a.e("s_cmp_ge_u32 s2, 256")
    a.e("s_cbranch_scc1 L_oproj_done")
    a.e("s_load_dwordx2 s[44:45], s[0:1], 32")
    a.e("s_load_dwordx2 s[46:47], s[0:1], 72")
    a.e("s_load_dwordx2 s[48:49], s[0:1], 80")
    a.e("s_load_dwordx2 s[50:51], s[0:1], 96")
    a.e("v_lshrrev_b32 v73, 6, v0")
    a.e("v_and_b32 v74, 63, v0")
    a.e("s_nop 0")
    a.e("v_readfirstlane_b32 s24, v73")
    a.e("s_and_b32 s30, s2, 7")
    a.e("s_lshr_b32 s31, s2, 3")
    a.e("s_lshr_b32 s32, s30, 2")
    a.e("s_bfe_u32 s33, s30, 0x10001")
    a.e("s_lshl_b32 s33, s33, 2")
    a.e("s_lshr_b32 s34, s31, 3")
    a.e("s_add_u32 s33, s33, s34")
    a.e("s_and_b32 s34, s30, 1")
    a.e("s_lshl_b32 s34, s34, 3")
    a.e("s_and_b32 s35, s31, 7")
    a.e("s_add_u32 s34, s34, s35")
    if OPT.get("map2"):
        a.e("s_lshr_b32 s33, s31, 2")
        a.e("s_and_b32 s34, s30, 3")
        a.e("s_lshl_b32 s34, s34, 2")
        a.e("s_and_b32 s35, s31, 3")
        a.e("s_add_u32 s34, s34, s35")
    a.e("s_lshl_b32 s25, s32, 3")
    a.e("s_add_u32 s25, s25, s33")
    a.e("s_lshl_b32 s25, s25, 2")
    a.e("s_add_u32 s25, s25, s24")
    a.e("s_lshl_b32 s25, s25, 18")
    a.e("s_lshl_b32 s26, s34, 7")
    a.e("s_mul_i32 s28, s33, 458752")
    a.e("s_lshl_b32 s35, s32, 11")
    a.e("s_add_u32 s28, s28, s35")
    a.e("s_add_u32 s28, s28, s26")
    a.e("s_lshl_b32 s29, s24, 12")
    a.e("s_add_u32 s54, s33, s34")
    a.e("s_and_b32 s54, s54, 7")
    a.e("s_lshl_b32 s54, s54, 2" if OPT.get("rot2") else "s_mov_b32 s54, 0")
    a.e("s_mov_b32 s38, -1"); a.e("s_mov_b32 s39, -1")
    a.e("s_cmp_eq_u32 s24, 3")
    a.e("s_cselect_b32 s38, 0xffff, s38")
    a.e("s_cselect_b32 s39, 0xffff, s39")
    a.e("s_waitcnt lgkmcnt(0)")
    a.e("s_cmp_eq_u32 s32, 0")
    a.e("s_cselect_b32 s8, s44, s46")
    a.e("s_cselect_b32 s9, s45, s47")
    a.e("s_mov_b32 s10, 0x800000"); a.e("s_mov_b32 s11, 0x00020000")
    a.e("s_mov_b32 s4, s50"); a.e("s_mov_b32 s5, s51")
    a.e("s_mov_b32 s6, 0x1000000"); a.e("s_mov_b32 s7, 0x00020000")
    a.e("s_mov_b32 s20, s48"); a.e("s_mov_b32 s21, s49")
    a.e("s_mov_b32 s22, 3670016"); a.e("s_mov_b32 s23, 0x00020000")
    lane = 74
    if OPT.get("stamp"):
        a.e("s_mov_b32 s64, s50"); a.e("s_mov_b32 s65, s51"); a.e("s_mov_b32 s66, 0x4000000"); a.e("s_mov_b32 s67, 0x00020000")
        a.e("s_lshl_b32 s72, s2, 2"); a.e("s_add_u32 s72, s72, s24"); a.e("s_lshl_b32 s72, s72, 8"); a.e("s_add_u32 s72, s72, 0x2100000")
        a.stamp(0, "s[64:67]", 75)
        a.stamp(12, "s[64:67]", 75, True)
    a.e(f"v_lshrrev_b32 v75, 3, v{lane}")
    a.e(f"v_and_b32 v76, 7, v{lane}")
    a.e(f"v_bfe_u32 v77, v{lane}, 4, 1")
    a.e("v_lshlrev_b32 v77, 2, v77")
    a.e("v_xor_b32 v76, v76, v77")
    a.e("s_lshl_b32 s30, s24, 16")
    a.e("v_lshlrev_b32 v75, 11, v75")
    a.e("v_add_u32 v75, s30, v75")
    a.e("v_lshl_add_u32 v75, v76, 4, v75")
    for i in range(4):
        a.e(f"v_add_u32 v{DW+i}, {i*(8*2048-1024)}, v75")
    a.e(f"v_lshrrev_b32 v75, 5, v{lane}")
    a.e(f"v_bfe_u32 v76, v{lane}, 2, 2")
    a.e(f"v_bfe_u32 v77, v{lane}, 4, 1")
    a.e(f"v_and_b32 v78, 1, v{lane}")
    a.e("v_lshl_add_u32 v77, v77, 1, v78")
    a.e(f"v_bfe_u32 v78, v{lane}, 3, 1")
    a.e("v_lshl_add_u32 v77, v78, 2, v77")
    a.e("v_lshlrev_b32 v77, 4, v77")
    a.e(f"v_bfe_u32 v78, v{lane}, 1, 1")
    a.e("v_lshl_add_u32 v77, v78, 3, v77")
    a.e("v_lshl_add_u32 v77, v76, 7, v77")
    a.e("v_lshl_add_u32 v77, v75, 10, v77")
    for T in range(2):
        a.e(f"v_xor_b32 v{VA+T}, {T<<6}, v77")
        a.e(f"v_add_u32 v{VA+2+T}, 0x10000, v{VA+T}")
    a.e(f"v_lshlrev_b32 v{XO}, 4, v{lane}")
    a.e(f"v_and_b32 v76, 31, v{lane}")
    a.e("s_lshl_b32 s30, s24, 5")
    a.e("v_add_u32 v76, s30, v76")
    a.e("v_lshlrev_b32 v75, 4, v75")
    a.e("v_lshl_add_u32 v78, v76, 12, v75")
    a.e("v_cmp_gt_u32 vcc, 112, v76")
    a.e("s_nop 1")
    a.e("s_mov_b64 s[40:41], vcc")
    NT_ = 32
    dma_id = {}; b_id = {}
    def issue_tile(t):
        slot = t % NS
        a.e(f"s_add_u32 s30, s29, {slot*SLOT}")
        a.e("s_mov_b32 m0, s30")
        a.e(f"s_add_u32 s31, s54, {t}"); a.e("s_and_b32 s31, s31, 31"); a.e("s_lshl_b32 s31, s31, 18"); a.e("s_add_u32 s31, s31, s26")
        for i in range(4):
            dma_id[t] = a.vm(f"buffer_load_dwordx4 v{DW+i}, s[8:11], s31 offen offset:{i*1024}{' nt' if OPT.get('ntw') else ''} lds")
    def issue_b(t):
        base = BF + (t % NSB) * 32
        a.e("s_mov_b64 exec, s[38:39]")
        for hf in range(2):
            a.e(f"s_add_u32 s31, s54, {t}"); a.e("s_and_b32 s31, s31, 31"); a.e("s_lshl_b32 s31, s31, 13"); a.e("s_add_u32 s31, s31, s25"); a.e(f"s_add_u32 s31, s31, {hf*4096}")
            for s in range(4):
                b_id[t] = a.vm(f"buffer_load_dwordx4 {vr(base+4*(4*hf+s),4)}, v{XO}, s[4:7], s31 offen offset:{s*1024}{' nt' if OPT.get('nto') else ''}")
        a.e("s_mov_b64 exec, -1")
    fillers = []
    TOUCH = OPT.get("touch")
    def touch(part):
        a.e("s_lshr_b32 s52, s2, 3")
        a.e("s_lshl_b32 s52, s52, 2")
        a.e("s_add_u32 s52, s52, s24")
        a.e("s_lshl_b32 s52, s52, 15")
        a.e("s_and_b32 s53, s2, 3")
        a.e("s_lshl_b32 s53, s53, 9")
        a.e("s_add_u32 s52, s52, s53")
        a.e(f"s_add_u32 s52, s52, {part*2048*2048}")
        a.e(f"v_lshrrev_b32 v75, 2, v{lane}")
        a.e(f"v_and_b32 v76, 3, v{lane}")
        a.e("v_lshlrev_b32 v76, 7, v76")
        a.e("v_lshl_add_u32 v75, v75, 11, v76")
        a.vm(f"buffer_load_dword v79, v75, s[8:11], s52 offen{' nt' if TOUCH == 'nt' else ''}")
    if TOUCH: touch(0)
    def queue_tile(t):
        slot = t % NS
        def mk(i):
            def f():
                if i == 0:
                    a.e(f"s_add_u32 s30, s29, {slot*SLOT}")
                    a.e("s_mov_b32 m0, s30")
                    a.e(f"s_add_u32 s36, s54, {t}"); a.e("s_and_b32 s36, s36, 31"); a.e("s_lshl_b32 s36, s36, 18"); a.e("s_add_u32 s36, s36, s26")
                dma_id[t] = a.vm(f"buffer_load_dwordx4 v{DW+i}, s[8:11], s36 offen offset:{i*1024}{' nt' if OPT.get('ntw') else ''} lds")
            return f
        for i in range(4): fillers.append(mk(i))
    def queue_b(t):
        base = BF + (t % NSB) * 32
        def mk(j):
            def f():
                hf, s_ = j // 4, j % 4
                if s_ == 0:
                    a.e(f"s_add_u32 s37, s54, {t}"); a.e("s_and_b32 s37, s37, 31"); a.e("s_lshl_b32 s37, s37, 13"); a.e("s_add_u32 s37, s37, s25"); a.e(f"s_add_u32 s37, s37, {hf*4096}")
                a.e("s_mov_b64 exec, s[38:39]")
                b_id[t] = a.vm(f"buffer_load_dwordx4 {vr(base+4*j,4)}, v{XO}, s[4:7], s37 offen offset:{s_*1024}{' nt' if OPT.get('nto') else ''}")
                a.e("s_mov_b64 exec, -1")
            return f
        for j in range(8): fillers.append(mk(j))
    for t in range(max(NS, NSB - 1)):
        if t < NS: issue_tile(t)
        if t < NSB - 1: issue_b(t)
    items = []
    for t in range(NT_):
        for s in range(8):
            for T in range(2):
                first = (s == 0 and T == 0)
                def pre_read(t=t, first=first):
                    if first:
                        a.c(f"---- step {t}")
                        a.wait(vm=dma_id[t])
                        a.e("s_barrier")
                        if t % 4 == 0: a.stamp(16 + t // 4, "s[64:67]", 75)
                        if TOUCH and t == 4: touch(1)
                        if t >= 2 and t + NS - 2 < NT_: queue_tile(t + NS - 2)
                def rd(buf, t=t, s=s, T=T):
                    sb = (t % NS) * SLOT
                    va = VA + T
                    if sb >= 65536: va += 2; sb -= 65536
                    assert sb < 65536
                    a.lg(f"ds_read_b64_tr_b16 {vr(buf,2)}, v{va} offset:{sb + s*2048}")
                    return a.lg(f"ds_read_b64_tr_b16 {vr(buf+2,2)}, v{va} offset:{sb + s*2048 + 512}")
                def pm(t=t, first=first):
                    if first:
                        a.wait(vm=b_id[t])
                        if t + NSB - 1 < NT_: queue_b(t + NSB - 1)
                def mm(buf, t=t, s=s, T=T):
                    bb = BF + (t % NSB) * 32
                    c = "0" if (t == 0 and s == 0) else vr(ACC+16*T, 16)
                    a.e(f"v_mfma_f32_32x32x16_bf16 {vr(ACC+16*T,16)}, {vr(buf,4)}, {vr(bb+4*s,4)}, {c}")
                items.append(Item(pre_read, rd, pm, mm))
    run_pipeline(a, items, AF, NBUF, NRING, fillers)
    a.stamp(11, "s[64:67]", 75)
    a.stamp(13, "s[64:67]", 75, True)
    a.e("s_nop 7"); a.e("s_nop 5")
    for T in range(2):
        for u in range(2):
            for r in range(4):
                a.e(f"v_cvt_pk_bf16_f32 v{BF+4*(2*T+u)+r}, v{ACC+16*T+8*u+2*r}, v{ACC+16*T+8*u+2*r+1}")
    a.e("s_and_saveexec_b64 s[42:43], s[40:41]")
    a.e("s_cbranch_execz L_oproj_done")
    for T in range(2):
        for u in range(2):
            a.vm(f"buffer_store_dwordx4 {vr(BF+4*(2*T+u),4)}, v78, s[20:23], s28 offen offset:{T*64+u*32}")
    a.label("L_oproj_done")
    a.e("s_endpgm")
    return a.text()

def kd(name, vgpr, sgpr=102):
    return f""".amdhsa_kernel {name}
  .amdhsa_next_free_vgpr {vgpr}
  .amdhsa_next_free_sgpr {sgpr}
  .amdhsa_accum_offset {(vgpr+3)//4*4}
  .amdhsa_group_segment_fixed_size 0
  .amdhsa_kernarg_size 104
  .amdhsa_user_sgpr_count 2
  .amdhsa_user_sgpr_kernarg_segment_ptr 1
  .amdhsa_system_sgpr_workgroup_id_x 1
.end_amdhsa_kernel
"""

LDS2 = 16384 * int(OPT.get("ns2", 8))
hdr = f"""; fused MHA x2: kernel 1 = Q projection + attention per (block, batch, head); kernel 2 = output projection
; @launch kernel=attn_kernel grid=(256,1,1) block=(512,1,1) lds=163840
; @launch kernel=oproj_kernel grid=(256,1,1) block=(256,1,1) lds={LDS2}
.amdgcn_target "amdgcn-amd-amdhsa--gfx950"
.text
"""
body = hdr
for name, fn in (("attn_kernel", gen_attn), ("oproj_kernel", gen_oproj)):
    body += f".globl {name}\n.p2align 8\n.type {name},@function\n" + fn()
body += '.section .rodata,"a"\n.p2align 6\n' + kd("attn_kernel", 256) + ".p2align 6\n" + kd("oproj_kernel", 80 + 32 * int(OPT.get("nsb", 5)))
open(OUT, "w").write(body)
```

```python
import sys, math, struct

OUT = sys.argv[1] if len(sys.argv) > 1 else "out.s"
OPT = dict(x.split("=") for x in sys.argv[2:])

class Asm:
    def __init__(self):
        self.lines = []
        self.vm_seq = 0
        self.lg_seq = 0
    def e(self, s): self.lines.append("    " + s)
    def label(self, s): self.lines.append(s + ":")
    def c(self, s): self.lines.append("    ; " + s)
    def vm(self, s):
        self.e(s); self.vm_seq += 1
        return self.vm_seq
    def lg(self, s):
        self.e(s); self.lg_seq += 1
        return self.lg_seq
    def wait(self, vm=None, lg=None):
        parts = []
        if vm is not None:
            n = self.vm_seq - vm; assert n >= 0
            parts.append(f"vmcnt({min(n, 63)})")
        if lg is not None:
            n = self.lg_seq - lg; assert n >= 0
            parts.append(f"lgkmcnt({min(n, 15)})")
        self.e("s_waitcnt " + " ".join(parts))
    def text(self): return "\n".join(self.lines) + "\n"
    def stamp(self, idx, srd, vtmp, real=False):
        if not OPT.get("stamp"): return
        if OPT.get("stamp") == "2" and idx not in (0, 11, 12, 13): return
        self.e("s_memrealtime s[70:71]" if real else "s_memtime s[70:71]")
        self.e("s_waitcnt lgkmcnt(0)")
        self.e(f"v_mov_b32 v{vtmp}, s70")
        self.e(f"v_mov_b32 v{vtmp+1}, s72")
        self.vm(f"buffer_store_dword v{vtmp}, v{vtmp+1}, {srd}, 0 offen offset:{idx*4}")

def vr(b, n=1):
    return f"v{b}" if n == 1 else f"v[{b}:{b+n-1}]"

SCALE = 128 ** -0.5
CEXP = SCALE * math.log2(math.e)
def f32bits(x): return "0x%08x" % struct.unpack("<I", struct.pack("<f", x))[0]
NT = " nt"

WAITG = int(OPT.get("waitg", 2))
class Item:
    def __init__(self, pre_read=None, reads=None, pre_mfma=None, mfma=None):
        self.pre_read = pre_read
        self.reads = reads
        self.pre_mfma = pre_mfma
        self.mfma = mfma

def run_pipeline(a, items, AF, NBUF, NRING, fillers=None, per=1):
    n = len(items)
    if fillers is None: fillers = []
    ids = {}
    def issue(j):
        it = items[j]
        if it.pre_read: it.pre_read()
        ids[j] = it.reads(AF + 4 * (j % NRING))
    for j in range(min(NBUF, n)):
        issue(j)
    for i in range(n):
        it = items[i]
        if it.pre_mfma: it.pre_mfma()
        if i % WAITG == 0:
            a.wait(lg=ids[min(i + WAITG - 1, n - 1)])
        it.mfma(AF + 4 * (i % NRING))
        for _ in range(per):
            if fillers: fillers.pop(0)()
        if i + NBUF < n:
            issue(i + NBUF)

def gen_attn():
    a = Asm()
    ACC = 0
    S = 64
    QF = 128
    PF = 160
    AF = 192
    NXS = int(OPT.get("nxs", 3))
    XS = 64
    XB = 112
    KVP = 144
    KA = 224
    VA = 232
    DK = 236
    DV = 240
    HI1K = 241; LANE16 = 242
    M = 243; L = 244
    T0 = 245
    DW = 224
    XO = 228
    LANE = 251
    WRA = 254
    XRA = 243
    XWA = 247
    TMP = 192
    NBUF = int(OPT.get("nbuf", 6)); NRING = 7
    NWS = 3
    XL = 49152
    NPRE = int(OPT.get("npre", 3))

    a.label("attn_kernel")
    a.e("s_cmp_ge_u32 s2, 512")
    a.e("s_cbranch_scc1 L_attn_done")
    a.e("s_load_dwordx8 s[44:51], s[0:1], 0")
    a.e("s_load_dwordx8 s[52:59], s[0:1], 40")
    a.e("s_load_dwordx2 s[60:61], s[0:1], 96")
    a.e("s_load_dwordx2 s[62:63], s[0:1], 32")
    a.e("s_load_dwordx2 s[68:69], s[0:1], 72")
    lane = LANE
    a.e(f"v_lshrrev_b32 v{TMP}, 6, v0")
    a.e(f"v_and_b32 v{lane}, 63, v0")
    a.e("s_nop 0")
    a.e(f"v_readfirstlane_b32 s24, v{TMP}")
    a.e("s_and_b32 s30, s2, 7")
    a.e("s_lshr_b32 s31, s2, 3")
    a.e("s_lshr_b32 s32, s30, 2")
    a.e("s_and_b32 s33, s30, 3")
    a.e("s_lshl_b32 s33, s33, 3")
    a.e("s_and_b32 s34, s31, 7")
    a.e("s_add_u32 s33, s33, s34")
    a.e("s_lshr_b32 s34, s31, 3")
    a.e("s_mul_i32 s25, s34, 229376")
    a.e("s_lshl_b32 s26, s33, 8")
    a.e("s_lshl_b32 s27, s34, 5")
    a.e("s_add_u32 s27, s27, s33")
    a.e("s_lshl_b32 s27, s27, 17")
    a.e("s_lshl_b32 s28, s32, 3")
    a.e("s_add_u32 s28, s28, s34")
    a.e("s_lshl_b32 s28, s28, 2")
    a.e("s_add_u32 s28, s28, s24")
    a.e("s_lshl_b32 s28, s28, 18")
    a.e("s_lshl_b32 s35, s33, 13")
    a.e("s_add_u32 s28, s28, s35")
    a.e("s_lshl_b32 s29, s24, 12")
    a.e("s_lshl_b32 s36, s24, 11")
    a.e(f"s_mov_b32 s42, {f32bits(CEXP)}")
    a.e("s_add_u32 s43, s33, s34")
    a.e("s_and_b32 s43, s43, 7")
    a.e("s_lshl_b32 s43, s43, 1" if OPT.get("rot") else "s_mov_b32 s43, 0")
    a.e("s_mov_b32 s38, -1"); a.e("s_mov_b32 s39, -1")
    a.e("s_cmp_eq_u32 s24, 3")
    a.e("s_cselect_b32 s38, 0, s38")
    a.e("s_cselect_b32 s39, 0, s39")
    a.e("s_waitcnt lgkmcnt(0)")
    a.e("s_cmp_eq_u32 s32, 0")
    for d, (sa, sb) in ((4, (44, 52)), (12, (46, 54)), (16, (48, 56)), (8, (50, 58)), (76, (62, 68))):
        a.e(f"s_cselect_b32 s{d}, s{sa}, s{sb}")
        a.e(f"s_cselect_b32 s{d+1}, s{sa+1}, s{sb+1}")
    a.e("s_mov_b32 s6, 1835008"); a.e("s_mov_b32 s7, 0x00020000")
    a.e("s_mov_b32 s10, 0x800000"); a.e("s_mov_b32 s11, 0x00020000")
    a.e("s_mov_b32 s14, 0x2000000"); a.e("s_mov_b32 s15, 0x00020000")
    a.e("s_mov_b32 s18, 0x2000000"); a.e("s_mov_b32 s19, 0x00020000")
    a.e("s_mov_b32 s20, s60"); a.e("s_mov_b32 s21, s61")
    a.e("s_mov_b32 s22, 0x1000000"); a.e("s_mov_b32 s23, 0x00020000")
    a.e("s_mov_b32 s78, 0x800000"); a.e("s_mov_b32 s79, 0x00020000")
    if OPT.get("stamp"):
        a.e("s_mov_b32 s64, s60"); a.e("s_mov_b32 s65, s61"); a.e("s_mov_b32 s66, 0x4000000"); a.e("s_mov_b32 s67, 0x00020000")
        a.e("s_lshl_b32 s72, s2, 2"); a.e("s_add_u32 s72, s72, s24"); a.e("s_lshl_b32 s72, s72, 8"); a.e("s_add_u32 s72, s72, 0x2000000")
        a.stamp(0, "s[64:67]", 222)
        a.stamp(12, "s[64:67]", 222, True)
    t0, t1, t2, t3, t4 = TMP, TMP+1, TMP+2, TMP+3, TMP+4
    a.e(f"v_lshrrev_b32 v{t0}, 4, v{lane}")
    a.e(f"v_and_b32 v{t1}, 15, v{lane}")
    a.e(f"v_xor_b32 v{t2}, v{t0}, v{t1}")
    a.e(f"v_lshlrev_b32 v{t3}, 8, v{t0}")
    a.e(f"v_add_u32 v{t3}, s29, v{t3}")
    for i in range(4):
        a.e(f"v_xor_b32 v{t4}, {4*i}, v{t2}")
        a.e(f"v_lshl_add_u32 v{DK+i}, v{t4}, 4, v{t3}")
    a.e(f"v_lshlrev_b32 v{t4}, 2, v{t0}")
    a.e(f"v_xor_b32 v{t4}, v{t4}, v{t1}")
    a.e(f"v_lshl_add_u32 v{DV}, v{t4}, 4, v{t3}")
    a.e("s_lshl_b32 s30, s24, 17")
    a.e(f"v_lshlrev_b32 v{t3}, 13, v{t0}")
    a.e(f"v_add_u32 v{t3}, s30, v{t3}")
    a.e(f"v_lshl_add_u32 v{t3}, v{t4}, 4, v{t3}")
    for i in range(4):
        a.e(f"v_add_u32 v{DW+i}, {i*(4*8192-1024)}, v{t3}")
    a.e(f"v_and_b32 v{t0}, 31, v{lane}")
    a.e(f"v_lshrrev_b32 v{t1}, 5, v{lane}")
    a.e(f"v_bfe_u32 v{t2}, v{t0}, 1, 3")
    a.e(f"v_xor_b32 v{t2}, v{t2}, v{t1}")
    a.e(f"v_lshlrev_b32 v{t2}, 4, v{t2}")
    a.e(f"v_lshl_add_u32 v{t2}, v{t0}, 7, v{t2}")
    a.e(f"s_add_u32 s30, s29, {XL}")
    a.e(f"v_add_u32 v{t2}, s30, v{t2}")
    for s_ in range(4):
        a.e(f"v_xor_b32 v{XRA+s_}, {s_<<5}, v{t2}")
    a.e(f"v_lshrrev_b32 v{t2}, 3, v{lane}")
    a.e(f"v_and_b32 v{t3}, 7, v{lane}")
    a.e("s_lshl_b32 s31, s24, 16")
    a.e(f"v_lshlrev_b32 v{t2}, 11, v{t2}")
    a.e(f"v_add_u32 v{t2}, s31, v{t2}")
    a.e(f"v_lshrrev_b32 v{t4}, 4, v{lane}")
    a.e(f"v_xor_b32 v{t3}, v{t3}, v{t4}")
    for i in range(4):
        a.e(f"v_xor_b32 v{t4}, {(4*i)&7}, v{t3}")
        a.e(f"v_lshl_add_u32 v{t4}, v{t4}, 4, v{t2}")
        a.e(f"v_add_u32 v{XO+i}, {i*(16384-1024)}, v{t4}")
    a.e(f"v_bfe_u32 v{t2}, v{lane}, 2, 2")
    a.e(f"v_bfe_u32 v{t3}, v{lane}, 4, 1")
    a.e(f"v_and_b32 v{t4}, 1, v{lane}")
    a.e(f"v_lshl_add_u32 v{t3}, v{t3}, 1, v{t4}")
    a.e(f"v_lshl_add_u32 v{t3}, v{t2}, 2, v{t3}")
    a.e(f"v_lshlrev_b32 v{t3}, 4, v{t3}")
    a.e(f"v_bfe_u32 v{t4}, v{lane}, 1, 1")
    a.e(f"v_lshl_add_u32 v{t3}, v{t4}, 3, v{t3}")
    a.e(f"v_lshl_add_u32 v{t3}, v{t2}, 8, v{t3}")
    a.e(f"v_lshl_add_u32 v{t3}, v{t1}, 11, v{t3}")
    for T in range(4):
        a.e(f"v_xor_b32 v{VA+T}, {T<<6}, v{t3}")
    a.e(f"v_lshlrev_b32 v{HI1K}, 10, v{t1}")
    a.e(f"v_lshlrev_b32 v{LANE16}, 4, v{lane}")
    a.e(f"v_add_u32 v{WRA}, s29, v{LANE16}")

    def make_ka():
        u0, u1, u2 = 252, 253, 255
        a.e(f"v_and_b32 v{u0}, 31, v{lane}")
        a.e(f"v_lshrrev_b32 v{u1}, 5, v{lane}")
        a.e(f"v_and_b32 v{u2}, 15, v{u0}")
        a.e(f"v_xor_b32 v{u2}, v{u2}, v{u1}")
        a.e(f"v_lshlrev_b32 v{u2}, 4, v{u2}")
        a.e(f"v_lshl_add_u32 v{u2}, v{u0}, 8, v{u2}")
        for s_ in range(8):
            a.e(f"v_xor_b32 v{KA+s_}, {s_<<5}, v{u2}")
    addr_of = {}; dma_id = {}; x_id = {}; state = {}
    fillers = []
    def now_or_later(fs, later):
        for f in fs:
            if later: fillers.append(f)
            else: f()
    def flush_until(cond):
        while not cond():
            fillers.pop(0)()
    NTQ = " nt" if OPT.get("ntq") else ""
    def issue_tile(tile, addr, later=False):
        kind, idx = tile
        addr_of[tile] = addr
        fs = []
        for p in range(2):
            def f(p=p):
                a.e(f"s_add_u32 m0, s29, {addr}")
                if kind == "W":
                    a.e(f"s_add_u32 s31, s26, {idx*64*8192}")
                else:
                    a.e(f"s_add_u32 s31, s27, {idx*16384}")
                for i in (2*p, 2*p+1):
                    if kind == "W":
                        r = a.vm(f"buffer_load_dwordx4 v{DW+i}, s[8:11], s31 offen offset:{i*1024}{NTQ} lds")
                    elif kind == "K":
                        r = a.vm(f"buffer_load_dwordx4 v{DK+i}, s[12:15], s31 offen offset:{i*1024}{NT} lds")
                    else:
                        r = a.vm(f"buffer_load_dwordx4 v{DV}, s[16:19], s31 offen offset:{i*1024}{NT} lds")
                if p == 1: dma_id[tile] = r
            fs.append(f)
        now_or_later(fs, later)
    pre_id = {}
    def issue_pre(tile, slot):
        kind, idx = tile
        a.e(f"s_add_u32 s31, s27, {idx*16384}")
        for i in range(4):
            d = vr(KVP + 16*slot + 4*i, 4)
            if kind == "K":
                pre_id[tile] = a.vm(f"buffer_load_dwordx4 {d}, v{DK+i}, s[12:15], s31 offen offset:{i*1024}{NT}")
            else:
                pre_id[tile] = a.vm(f"buffer_load_dwordx4 {d}, v{DV}, s[16:19], s31 offen offset:{i*1024}{NT}")
    def spill_pre(tile, slot, addr):
        addr_of[tile] = addr
        a.wait(vm=pre_id[tile])
        for i in range(4):
            state["prew", tile] = a.lg(f"ds_write_b128 v{WRA}, {vr(KVP + 16*slot + 4*i, 4)} offset:{addr + i*1024}")
    def issue_x(t, later=False):
        fs = []
        for p in range(2):
            def f(p=p):
                if p == 0 and ("xr", t - 2) in state:
                    a.wait(lg=state["xr", t - 2])
                a.e(f"s_add_u32 m0, s29, {XL + (t%2)*16384}")
                a.e(f"s_add_u32 s37, s25, {t*128}")
                if p == 1: a.e("s_mov_b64 exec, s[38:39]")
                for i in (2*p, 2*p+1):
                    r = a.vm(f"buffer_load_dwordx4 v{XO+i}, s[4:7], s37 offen offset:{i*1024}{NTQ} lds")
                if p == 1:
                    a.e("s_mov_b64 exec, -1")
                    x_id[t] = r
            fs.append(f)
        now_or_later(fs, later)

    cons = [("W", t) for t in range(16)]
    for g in range(4):
        cons += [("K", 2*g), ("K", 2*g+1), ("V", 2*g), ("V", 2*g+1)]
    kv_all = cons[16:]
    pre_tiles = kv_all[:NPRE]
    kvq = kv_all[NPRE:]
    if OPT.get("prio") in ("1", "2"): a.e("s_setprio 2")
    issue_x(0)
    issue_tile(("W", 0), 0)
    issue_x(1)
    issue_tile(("W", 1), 16384)
    issue_tile(("W", 2), 32768)
    PRE_AT = int(OPT.get("preat", -1))
    if PRE_AT < 0:
        for i, tl in enumerate(pre_tiles): issue_pre(tl, i)
    pre_left = list(enumerate(pre_tiles))
    def fill_region(addr, dma_only=False):
        if pre_left and not dma_only:
            i, tl = pre_left.pop(0)
            spill_pre(tl, i, addr)
        elif kvq:
            issue_tile(kvq.pop(0), addr, True)
    def sync(n):
        tile = cons[n]
        drain = (n <= 16)
        if tile in pre_tiles:
            if drain: a.e("s_waitcnt lgkmcnt(0)")
            else: a.wait(lg=state["prew", tile])
        else:
            flush_until(lambda: tile in dma_id)
            w = dma_id[tile]
            if tile[0] == "W":
                flush_until(lambda: n in x_id)
                w = max(w, x_id[n])
            a.wait(vm=w, lg=a.lg_seq if drain else None)
        a.e("s_barrier")
        if n == 0: a.stamp(1, "s[64:67]", 222)
        if n in (2, 4, 6, 8, 10, 12, 14): a.stamp(16 + n // 2, "s[64:67]", 222)
        if PRE_AT >= 0 and PRE_AT <= n < PRE_AT + 2 * NPRE and (n - PRE_AT) % 2 == 0:
            i = (n - PRE_AT) // 2
            fillers.append(lambda i=i: issue_pre(pre_tiles[i], i))
        if 1 <= n <= 13:
            issue_tile(("W", n + 2), addr_of[cons[n-1]], True)
        elif 14 <= n <= 16:
            fill_region(addr_of[cons[n-1]])
        elif n >= 18:
            fill_region(addr_of[cons[n-2]])
        if n == 15: fill_region(XL, True)
        if n == 16: fill_region(XL + 16384, True)

    cur_shift = {"K": 0, "V": 0}
    def adjust(kind, addr):
        regs = range(KA, KA+8) if kind == "K" else range(VA, VA+4)
        want = 65536 if addr >= 65536 else 0
        if cur_shift[kind] != want:
            d = want - cur_shift[kind]
            for r in regs:
                a.e(f"v_add_u32 v{r}, {d & 0xffffffff:#x}, v{r}")
            cur_shift[kind] = want
        return addr - want

    def softmax(g):
        a.stamp(3+2*g, "s[64:67]", 222)
        if OPT.get("prio") == "1": a.e("s_setprio 0")
        a.e("s_nop 7"); a.e("s_nop 5")
        for ch in range(4):
            b = S + 16*ch
            a.e(f"v_max3_f32 v{T0+ch}, v{b}, v{b+1}, v{b+2}")
        for k in range(6):
            for ch in range(4):
                b = S + 16*ch
                a.e(f"v_max3_f32 v{T0+ch}, v{T0+ch}, v{b+3+2*k}, v{b+4+2*k}")
        for ch in range(4):
            a.e(f"v_max_f32 v{T0+ch}, v{T0+ch}, v{S+16*ch+15}")
        a.e(f"v_max3_f32 v{T0}, v{T0}, v{T0+1}, v{T0+2}")
        a.e(f"v_max_f32 v{T0}, v{T0}, v{T0+3}")
        a.e(f"v_mov_b32 v{T0+1}, v{T0}")
        a.e("s_nop 1")
        a.e(f"v_permlane32_swap_b32 v{T0}, v{T0+1}")
        a.e("s_nop 1")
        if g == 0:
            a.e(f"v_max_f32 v{M}, v{T0}, v{T0+1}")
        else:
            a.e(f"v_max3_f32 v{T0}, v{T0}, v{T0+1}, v{M}")
            a.e(f"v_sub_f32 v{T0+1}, v{M}, v{T0}")
            a.e(f"v_mul_f32 v{T0+1}, s42, v{T0+1}")
            a.e(f"v_exp_f32 v{T0+1}, v{T0+1}")
            a.e(f"v_mov_b32 v{M}, v{T0}")
            a.e(f"v_mul_f32 v{L}, v{L}, v{T0+1}")
            for r in range(64):
                a.e(f"v_mul_f32 v{ACC+r}, v{ACC+r}, v{T0+1}")
                if r % 16 == 15 and fillers: fillers.pop(0)()
        a.e(f"v_mul_f32 v{T0}, s42, v{M}")
        for blk in range(8):
            b = S + 8*blk
            for r in range(8):
                a.e(f"v_fma_f32 v{b+r}, v{b+r}, s42, -v{T0}")
            for r in range(8):
                a.e(f"v_exp_f32 v{b+r}, v{b+r}")
            if fillers: fillers.pop(0)()
            if blk == 0:
                for r in range(4):
                    a.e(f"v_add_f32 v{T0+2+r}, v{b+r}, v{b+4+r}")
            else:
                for r in range(8):
                    a.e(f"v_add_f32 v{T0+2+(r&3)}, v{T0+2+(r&3)}, v{b+r}")
            for r in range(4):
                a.e(f"v_cvt_pk_bf16_f32 v{PF+4*blk+r}, v{b+2*r}, v{b+2*r+1}")
        a.e(f"v_add_f32 v{T0+2}, v{T0+2}, v{T0+3}")
        a.e(f"v_add_f32 v{T0+4}, v{T0+4}, v{T0+5}")
        a.e(f"v_add_f32 v{T0+2}, v{T0+2}, v{T0+4}")
        if g == 0:
            a.e(f"v_mov_b32 v{L}, v{T0+2}")
        else:
            a.e(f"v_add_f32 v{L}, v{L}, v{T0+2}")

    def qconv():
        a.stamp(2, "s[64:67]", 222)
        if OPT.get("prio") == "2": a.e("s_setprio 0")
        a.e("s_nop 7"); a.e("s_nop 5")
        for T in range(4):
            for u in range(2):
                for r in range(4):
                    a.e(f"v_cvt_pk_bf16_f32 v{QF+4*(2*T+u)+r}, v{ACC+16*T+8*u+2*r}, v{ACC+16*T+8*u+2*r+1}")
        a.e("s_nop 1")

    items = []
    for n, tile in enumerate(cons):
        kind, idx = tile
        if kind == "W":
            t = idx
            for s in range(4):
                for T in range(4):
                    first = (s == 0 and T == 0)
                    def pre_read(n=n, first=first, t=t):
                        if first:
                            sync(n)
                    def rd(buf, tile=tile, s=s, T=T, t=t):
                        sb = addr_of[tile]
                        if s == 0:
                            state["xr", t] = a.lg(f"ds_read_b128 {vr(XB+(t%2)*16+4*T,4)}, v{XRA+T} offset:{(t%2)*16384}")
                        if s == 2 and T == 0 and t + 2 < 16: issue_x(t + 2, True)
                        a.lg(f"ds_read_b64_tr_b16 {vr(buf,2)}, v{VA+T} offset:{sb + s*4096}")
                        return a.lg(f"ds_read_b64_tr_b16 {vr(buf+2,2)}, v{VA+T} offset:{sb + s*4096 + 1024}")
                    def mm(buf, idx=idx, s=s, T=T, t=t):
                        c = "0" if (idx == 0 and s == 0) else vr(ACC+16*T, 16)
                        a.e(f"v_mfma_f32_32x32x16_bf16 {vr(ACC+16*T,16)}, {vr(buf,4)}, {vr(XB+(t%2)*16+4*s,4)}, {c}")
                    items.append(Item(pre_read, rd, None, mm))
        elif kind == "K":
            jj = idx & 1
            for s in range(8):
                for ks in range(2):
                    first = (s == 0 and ks == 0)
                    def pre_read(n=n, first=first, tile=tile):
                        if first:
                            sync(n)
                            if tile == ("K", 0):
                                flush_until(lambda: not fillers)
                                make_ka()
                            state[tile] = adjust("K", addr_of[tile])
                    def rd(buf, tile=tile, s=s, ks=ks):
                        return a.lg(f"ds_read_b128 {vr(buf,4)}, v{KA+s} offset:{state[tile] + ks*8192}")
                    def pm(idx=idx, first=first):
                        if idx == 0 and first:
                            qconv()
                    def mm(buf, s=s, ks=ks, jj=jj):
                        d = S + 16*(2*jj+ks)
                        c = "0" if s == 0 else vr(d, 16)
                        a.e(f"v_mfma_f32_32x32x16_bf16 {vr(d,16)}, {vr(buf,4)}, {vr(QF+4*s,4)}, {c}")
                    items.append(Item(pre_read, rd, pm, mm))
        else:
            vv = idx & 1
            for u in range(4):
                for T in range(4):
                    first = (u == 0 and T == 0)
                    def pre_read(n=n, first=first, tile=tile, idx=idx):
                        if first:
                            sync(n)
                            if idx == 0:
                                for T_ in range(4):
                                    a.e(f"v_sub_u32 v{VA+T_}, v{VA+T_}, v{HI1K}")
                            state[tile] = adjust("V", addr_of[tile])
                    def rd(buf, tile=tile, u=u, T=T):
                        sb = state[tile]
                        a.lg(f"ds_read_b64_tr_b16 {vr(buf,2)}, v{VA+T} offset:{sb + u*4096}")
                        return a.lg(f"ds_read_b64_tr_b16 {vr(buf+2,2)}, v{VA+T} offset:{sb + u*4096 + 2048}")
                    def pm(idx=idx, first=first):
                        if first and idx % 2 == 0:
                            softmax(idx // 2)
                            if OPT.get("prio") == "1": a.e("s_setprio 2")
                            a.stamp(4+idx, "s[64:67]", 222)
                            a.e("s_nop 1")
                    def mm(buf, idx=idx, u=u, T=T, vv=vv):
                        c = "0" if (idx == 0 and u == 0) else vr(ACC+16*T, 16)
                        a.e(f"v_mfma_f32_32x32x16_bf16 {vr(ACC+16*T,16)}, {vr(buf,4)}, {vr(PF+4*(4*vv+u),4)}, {c}")
                    items.append(Item(pre_read, rd, pm, mm))
    run_pipeline(a, items, AF, NBUF, NRING, fillers)
    assert not fillers

    a.c("---- epilogue")
    a.stamp(11, "s[64:67]", 222)
    a.stamp(13, "s[64:67]", 222, True)
    a.e(f"v_mov_b32 v{T0+1}, v{L}")
    a.e("s_nop 1")
    a.e(f"v_permlane32_swap_b32 v{L}, v{T0+1}")
    a.e("s_nop 1")
    a.e(f"v_add_f32 v{L}, v{L}, v{T0+1}")
    a.e(f"v_rcp_f32 v{L}, v{L}")
    a.e("s_nop 7"); a.e("s_nop 3")
    for r in range(64):
        a.e(f"v_mul_f32 v{ACC+r}, v{ACC+r}, v{L}")
    for T in range(4):
        for u in range(2):
            for r in range(4):
                a.e(f"v_cvt_pk_bf16_f32 v{S+4*(2*T+u)+r}, v{ACC+16*T+8*u+2*r}, v{ACC+16*T+8*u+2*r+1}")
    for T in range(4):
        for u in range(2):
            ks = 2*T + u
            if ks % 4 == 0 and ks > 0:
                a.e("s_add_u32 s28, s28, 4096")
            a.vm(f"buffer_store_dwordx4 {vr(S+4*ks,4)}, v{LANE16}, s[20:23], s28 offen offset:{(ks%4)*1024}")
    if OPT.get("wend", "1") == "1":
        a.e("s_lshr_b32 s30, s2, 3")
        a.e("s_lshl_b32 s30, s30, 2")
        a.e("s_add_u32 s30, s30, s24")
        a.e(f"v_lshlrev_b32 v{T0}, 3, v{LANE16}")
        a.e("s_and_b32 s37, s2, 3")
        a.e("s_lshl_b32 s37, s37, 8")
        a.e("s_add_u32 s31, s30, s37")
        a.e("s_lshl_b32 s31, s31, 13")
        a.vm(f"buffer_load_dword v{T0+1}, v{T0}, s[76:79], s31 offen")
    a.label("L_attn_done")
    a.e("s_endpgm")
    return a.text()

def gen_oproj():
    a = Asm()
    NSB = int(OPT.get("nsb", 5))
    NS = int(OPT.get("ns2", 8)); SLOT = 16384
    ACC = 0
    AF = 32
    VA = 64
    DW = 68
    XO = 72
    BF = 80
    NBUF = int(OPT.get("nbuf2", 6)); NRING = 8
    a.label("oproj_kernel")
    a.e("s_cmp_ge_u32 s2, 256")
    a.e("s_cbranch_scc1 L_oproj_done")
    a.e("s_load_dwordx2 s[44:45], s[0:1], 32")
    a.e("s_load_dwordx2 s[46:47], s[0:1], 72")
    a.e("s_load_dwordx2 s[48:49], s[0:1], 80")
    a.e("s_load_dwordx2 s[50:51], s[0:1], 96")
    a.e("v_lshrrev_b32 v73, 6, v0")
    a.e("v_and_b32 v74, 63, v0")
    a.e("s_nop 0")
    a.e("v_readfirstlane_b32 s24, v73")
    a.e("s_and_b32 s30, s2, 7")
    a.e("s_lshr_b32 s31, s2, 3")
    a.e("s_lshr_b32 s32, s30, 2")
    a.e("s_bfe_u32 s33, s30, 0x10001")
    a.e("s_lshl_b32 s33, s33, 2")
    a.e("s_lshr_b32 s34, s31, 3")
    a.e("s_add_u32 s33, s33, s34")
    a.e("s_and_b32 s34, s30, 1")
    a.e("s_lshl_b32 s34, s34, 3")
    a.e("s_and_b32 s35, s31, 7")
    a.e("s_add_u32 s34, s34, s35")
    if OPT.get("map2"):
        a.e("s_lshr_b32 s33, s31, 2")
        a.e("s_and_b32 s34, s30, 3")
        a.e("s_lshl_b32 s34, s34, 2")
        a.e("s_and_b32 s35, s31, 3")
        a.e("s_add_u32 s34, s34, s35")
    a.e("s_lshl_b32 s25, s32, 3")
    a.e("s_add_u32 s25, s25, s33")
    a.e("s_lshl_b32 s25, s25, 2")
    a.e("s_add_u32 s25, s25, s24")
    a.e("s_lshl_b32 s25, s25, 18")
    a.e("s_lshl_b32 s26, s34, 7")
    a.e("s_mul_i32 s28, s33, 458752")
    a.e("s_lshl_b32 s35, s32, 11")
    a.e("s_add_u32 s28, s28, s35")
    a.e("s_add_u32 s28, s28, s26")
    a.e("s_lshl_b32 s29, s24, 12")
    a.e("s_add_u32 s54, s33, s34")
    a.e("s_and_b32 s54, s54, 7")
    a.e("s_lshl_b32 s54, s54, 2" if OPT.get("rot2") else "s_mov_b32 s54, 0")
    a.e("s_mov_b32 s38, -1"); a.e("s_mov_b32 s39, -1")
    a.e("s_cmp_eq_u32 s24, 3")
    a.e("s_cselect_b32 s38, 0xffff, s38")
    a.e("s_cselect_b32 s39, 0xffff, s39")
    a.e("s_waitcnt lgkmcnt(0)")
    a.e("s_cmp_eq_u32 s32, 0")
    a.e("s_cselect_b32 s8, s44, s46")
    a.e("s_cselect_b32 s9, s45, s47")
    a.e("s_mov_b32 s10, 0x800000"); a.e("s_mov_b32 s11, 0x00020000")
    a.e("s_mov_b32 s4, s50"); a.e("s_mov_b32 s5, s51")
    a.e("s_mov_b32 s6, 0x1000000"); a.e("s_mov_b32 s7, 0x00020000")
    a.e("s_mov_b32 s20, s48"); a.e("s_mov_b32 s21, s49")
    a.e("s_mov_b32 s22, 3670016"); a.e("s_mov_b32 s23, 0x00020000")
    lane = 74
    if OPT.get("stamp"):
        a.e("s_mov_b32 s64, s50"); a.e("s_mov_b32 s65, s51"); a.e("s_mov_b32 s66, 0x4000000"); a.e("s_mov_b32 s67, 0x00020000")
        a.e("s_lshl_b32 s72, s2, 2"); a.e("s_add_u32 s72, s72, s24"); a.e("s_lshl_b32 s72, s72, 8"); a.e("s_add_u32 s72, s72, 0x2100000")
        a.stamp(0, "s[64:67]", 75)
        a.stamp(12, "s[64:67]", 75, True)
    a.e(f"v_lshrrev_b32 v75, 3, v{lane}")
    a.e(f"v_and_b32 v76, 7, v{lane}")
    a.e(f"v_bfe_u32 v77, v{lane}, 4, 1")
    a.e("v_lshlrev_b32 v77, 2, v77")
    a.e("v_xor_b32 v76, v76, v77")
    a.e("s_lshl_b32 s30, s24, 16")
    a.e("v_lshlrev_b32 v75, 11, v75")
    a.e("v_add_u32 v75, s30, v75")
    a.e("v_lshl_add_u32 v75, v76, 4, v75")
    for i in range(4):
        a.e(f"v_add_u32 v{DW+i}, {i*(8*2048-1024)}, v75")
    a.e(f"v_lshrrev_b32 v75, 5, v{lane}")
    a.e(f"v_bfe_u32 v76, v{lane}, 2, 2")
    a.e(f"v_bfe_u32 v77, v{lane}, 4, 1")
    a.e(f"v_and_b32 v78, 1, v{lane}")
    a.e("v_lshl_add_u32 v77, v77, 1, v78")
    a.e(f"v_bfe_u32 v78, v{lane}, 3, 1")
    a.e("v_lshl_add_u32 v77, v78, 2, v77")
    a.e("v_lshlrev_b32 v77, 4, v77")
    a.e(f"v_bfe_u32 v78, v{lane}, 1, 1")
    a.e("v_lshl_add_u32 v77, v78, 3, v77")
    a.e("v_lshl_add_u32 v77, v76, 7, v77")
    a.e("v_lshl_add_u32 v77, v75, 10, v77")
    for T in range(2):
        a.e(f"v_xor_b32 v{VA+T}, {T<<6}, v77")
        a.e(f"v_add_u32 v{VA+2+T}, 0x10000, v{VA+T}")
    a.e(f"v_lshlrev_b32 v{XO}, 4, v{lane}")
    a.e(f"v_and_b32 v76, 31, v{lane}")
    a.e("s_lshl_b32 s30, s24, 5")
    a.e("v_add_u32 v76, s30, v76")
    a.e("v_lshlrev_b32 v75, 4, v75")
    a.e("v_lshl_add_u32 v78, v76, 12, v75")
    a.e("v_cmp_gt_u32 vcc, 112, v76")
    a.e("s_nop 1")
    a.e("s_mov_b64 s[40:41], vcc")
    NT_ = 32
    dma_id = {}; b_id = {}
    def issue_tile(t):
        slot = t % NS
        a.e(f"s_add_u32 s30, s29, {slot*SLOT}")
        a.e("s_mov_b32 m0, s30")
        a.e(f"s_add_u32 s31, s54, {t}"); a.e("s_and_b32 s31, s31, 31"); a.e("s_lshl_b32 s31, s31, 18"); a.e("s_add_u32 s31, s31, s26")
        for i in range(4):
            dma_id[t] = a.vm(f"buffer_load_dwordx4 v{DW+i}, s[8:11], s31 offen offset:{i*1024}{' nt' if OPT.get('ntw') else ''} lds")
    def issue_b(t):
        base = BF + (t % NSB) * 32
        a.e("s_mov_b64 exec, s[38:39]")
        for hf in range(2):
            a.e(f"s_add_u32 s31, s54, {t}"); a.e("s_and_b32 s31, s31, 31"); a.e("s_lshl_b32 s31, s31, 13"); a.e("s_add_u32 s31, s31, s25"); a.e(f"s_add_u32 s31, s31, {hf*4096}")
            for s in range(4):
                b_id[t] = a.vm(f"buffer_load_dwordx4 {vr(base+4*(4*hf+s),4)}, v{XO}, s[4:7], s31 offen offset:{s*1024}{' nt' if OPT.get('nto') else ''}")
        a.e("s_mov_b64 exec, -1")
    fillers = []
    TOUCH = OPT.get("touch")
    def touch(part):
        a.e("s_lshr_b32 s52, s2, 3")
        a.e("s_lshl_b32 s52, s52, 2")
        a.e("s_add_u32 s52, s52, s24")
        a.e("s_lshl_b32 s52, s52, 15")
        a.e("s_and_b32 s53, s2, 3")
        a.e("s_lshl_b32 s53, s53, 9")
        a.e("s_add_u32 s52, s52, s53")
        a.e(f"s_add_u32 s52, s52, {part*2048*2048}")
        a.e(f"v_lshrrev_b32 v75, 2, v{lane}")
        a.e(f"v_and_b32 v76, 3, v{lane}")
        a.e("v_lshlrev_b32 v76, 7, v76")
        a.e("v_lshl_add_u32 v75, v75, 11, v76")
        a.vm(f"buffer_load_dword v79, v75, s[8:11], s52 offen{' nt' if TOUCH == 'nt' else ''}")
    if TOUCH: touch(0)
    def queue_tile(t):
        slot = t % NS
        def mk(i):
            def f():
                if i == 0:
                    a.e(f"s_add_u32 s30, s29, {slot*SLOT}")
                    a.e("s_mov_b32 m0, s30")
                    a.e(f"s_add_u32 s36, s54, {t}"); a.e("s_and_b32 s36, s36, 31"); a.e("s_lshl_b32 s36, s36, 18"); a.e("s_add_u32 s36, s36, s26")
                dma_id[t] = a.vm(f"buffer_load_dwordx4 v{DW+i}, s[8:11], s36 offen offset:{i*1024}{' nt' if OPT.get('ntw') else ''} lds")
            return f
        for i in range(4): fillers.append(mk(i))
    def queue_b(t):
        base = BF + (t % NSB) * 32
        def mk(j):
            def f():
                hf, s_ = j // 4, j % 4
                if s_ == 0:
                    a.e(f"s_add_u32 s37, s54, {t}"); a.e("s_and_b32 s37, s37, 31"); a.e("s_lshl_b32 s37, s37, 13"); a.e("s_add_u32 s37, s37, s25"); a.e(f"s_add_u32 s37, s37, {hf*4096}")
                a.e("s_mov_b64 exec, s[38:39]")
                b_id[t] = a.vm(f"buffer_load_dwordx4 {vr(base+4*j,4)}, v{XO}, s[4:7], s37 offen offset:{s_*1024}{' nt' if OPT.get('nto') else ''}")
                a.e("s_mov_b64 exec, -1")
            return f
        for j in range(8): fillers.append(mk(j))
    for t in range(max(NS, NSB - 1)):
        if t < NS: issue_tile(t)
        if t < NSB - 1: issue_b(t)
    items = []
    for t in range(NT_):
        for s in range(8):
            for T in range(2):
                first = (s == 0 and T == 0)
                def pre_read(t=t, first=first):
                    if first:
                        a.c(f"---- step {t}")
                        a.wait(vm=dma_id[t])
                        a.e("s_barrier")
                        if t % 4 == 0: a.stamp(16 + t // 4, "s[64:67]", 75)
                        if TOUCH and t == 4: touch(1)
                        if t >= 2 and t + NS - 2 < NT_: queue_tile(t + NS - 2)
                def rd(buf, t=t, s=s, T=T):
                    sb = (t % NS) * SLOT
                    va = VA + T
                    if sb >= 65536: va += 2; sb -= 65536
                    assert sb < 65536
                    a.lg(f"ds_read_b64_tr_b16 {vr(buf,2)}, v{va} offset:{sb + s*2048}")
                    return a.lg(f"ds_read_b64_tr_b16 {vr(buf+2,2)}, v{va} offset:{sb + s*2048 + 512}")
                def pm(t=t, first=first):
                    if first:
                        a.wait(vm=b_id[t])
                        if t + NSB - 1 < NT_: queue_b(t + NSB - 1)
                def mm(buf, t=t, s=s, T=T):
                    bb = BF + (t % NSB) * 32
                    c = "0" if (t == 0 and s == 0) else vr(ACC+16*T, 16)
                    a.e(f"v_mfma_f32_32x32x16_bf16 {vr(ACC+16*T,16)}, {vr(buf,4)}, {vr(bb+4*s,4)}, {c}")
                items.append(Item(pre_read, rd, pm, mm))
    run_pipeline(a, items, AF, NBUF, NRING, fillers)
    a.stamp(11, "s[64:67]", 75)
    a.stamp(13, "s[64:67]", 75, True)
    a.e("s_nop 7"); a.e("s_nop 5")
    for T in range(2):
        for u in range(2):
            for r in range(4):
                a.e(f"v_cvt_pk_bf16_f32 v{BF+4*(2*T+u)+r}, v{ACC+16*T+8*u+2*r}, v{ACC+16*T+8*u+2*r+1}")
    a.e("s_and_saveexec_b64 s[42:43], s[40:41]")
    a.e("s_cbranch_execz L_oproj_done")
    for T in range(2):
        for u in range(2):
            a.vm(f"buffer_store_dwordx4 {vr(BF+4*(2*T+u),4)}, v78, s[20:23], s28 offen offset:{T*64+u*32}")
    a.label("L_oproj_done")
    a.e("s_endpgm")
    return a.text()

def kd(name, vgpr, sgpr=102):
    return f""".amdhsa_kernel {name}
  .amdhsa_next_free_vgpr {vgpr}
  .amdhsa_next_free_sgpr {sgpr}
  .amdhsa_accum_offset {(vgpr+3)//4*4}
  .amdhsa_group_segment_fixed_size 0
  .amdhsa_kernarg_size 104
  .amdhsa_user_sgpr_count 2
  .amdhsa_user_sgpr_kernarg_segment_ptr 1
  .amdhsa_system_sgpr_workgroup_id_x 1
.end_amdhsa_kernel
"""

LDS2 = 16384 * int(OPT.get("ns2", 8))
hdr = f"""; fused MHA x2: kernel 1 = Q projection + attention per (block, batch, head); kernel 2 = output projection
; @launch kernel=attn_kernel grid=(512,1,1) block=(256,1,1) lds=81920
; @launch kernel=oproj_kernel grid=(256,1,1) block=(256,1,1) lds={LDS2}
.amdgcn_target "amdgcn-amd-amdhsa--gfx950"
.text
"""
body = hdr
for name, fn in (("attn_kernel", gen_attn), ("oproj_kernel", gen_oproj)):
    body += f".globl {name}\n.p2align 8\n.type {name},@function\n" + fn()
body += '.section .rodata,"a"\n.p2align 6\n' + kd("attn_kernel", 256) + ".p2align 6\n" + kd("oproj_kernel", 80 + 32 * int(OPT.get("nsb", 5)))
open(OUT, "w").write(body)
```

```python
import sys, math, struct

OUT = sys.argv[1] if len(sys.argv) > 1 else "out.s"
OPT = dict(x.split("=") for x in sys.argv[2:])

class Asm:
    def __init__(self):
        self.lines = []
        self.vm_seq = 0
        self.lg_seq = 0
    def e(self, s): self.lines.append("    " + s)
    def label(self, s): self.lines.append(s + ":")
    def c(self, s): self.lines.append("    ; " + s)
    def vm(self, s):
        self.e(s); self.vm_seq += 1
        return self.vm_seq
    def lg(self, s):
        self.e(s); self.lg_seq += 1
        return self.lg_seq
    def wait(self, vm=None, lg=None):
        parts = []
        if vm is not None:
            n = self.vm_seq - vm; assert n >= 0
            parts.append(f"vmcnt({min(n, 63)})")
        if lg is not None:
            n = self.lg_seq - lg; assert n >= 0
            parts.append(f"lgkmcnt({min(n, 15)})")
        self.e("s_waitcnt " + " ".join(parts))
    def text(self): return "\n".join(self.lines) + "\n"
    def stamp(self, idx, srd, vtmp, real=False):
        if not OPT.get("stamp"): return
        if OPT.get("stamp") == "2" and idx not in (0, 11, 12, 13): return
        self.e("s_memrealtime s[70:71]" if real else "s_memtime s[70:71]")
        self.e("s_waitcnt lgkmcnt(0)")
        self.e(f"v_mov_b32 v{vtmp}, s70")
        self.e(f"v_mov_b32 v{vtmp+1}, s72")
        self.vm(f"buffer_store_dword v{vtmp}, v{vtmp+1}, {srd}, 0 offen offset:{idx*4}")

def vr(b, n=1):
    return f"v{b}" if n == 1 else f"v[{b}:{b+n-1}]"

SCALE = 128 ** -0.5
CEXP = SCALE * math.log2(math.e)
def f32bits(x): return "0x%08x" % struct.unpack("<I", struct.pack("<f", x))[0]
NT = " nt"

WAITG = int(OPT.get("waitg", 2))
class Item:
    def __init__(self, pre_read=None, reads=None, pre_mfma=None, mfma=None):
        self.pre_read = pre_read
        self.reads = reads
        self.pre_mfma = pre_mfma
        self.mfma = mfma

def run_pipeline(a, items, AF, NBUF, NRING, fillers=None, per=1):
    n = len(items)
    if fillers is None: fillers = []
    ids = {}
    def issue(j):
        it = items[j]
        if it.pre_read: it.pre_read()
        ids[j] = it.reads(AF + 4 * (j % NRING))
    for j in range(min(NBUF, n)):
        issue(j)
    for i in range(n):
        it = items[i]
        if it.pre_mfma: it.pre_mfma()
        if i % WAITG == 0:
            a.wait(lg=ids[min(i + WAITG - 1, n - 1)])
        it.mfma(AF + 4 * (i % NRING))
        for _ in range(per):
            if fillers: fillers.pop(0)()
        if i + NBUF < n:
            issue(i + NBUF)

def gen_attn():
    a = Asm()
    ACC = 0
    S = 64
    QF = 128
    PF = 160
    AF = 192
    NXS = int(OPT.get("nxs", 3))
    XS = 64
    XB = 112
    KVP = 144
    KA = 224
    VA = 232
    DK = 236
    DV = 240
    HI1K = 241; LANE16 = 242
    M = 243; L = 244
    T0 = 245
    DW = 224
    XO = 228
    LANE = 251
    WRA = 254
    XRA = 243
    XWA = 247
    TMP = 192
    NBUF = int(OPT.get("nbuf", 6)); NRING = 7
    NWS = 3
    XL = 49152
    NPRE = int(OPT.get("npre", 3))

    a.label("attn_kernel")
    a.e("s_cmp_ge_u32 s2, 512")
    a.e("s_cbranch_scc1 L_attn_done")
    a.e("s_load_dwordx8 s[44:51], s[0:1], 0")
    a.e("s_load_dwordx8 s[52:59], s[0:1], 40")
    a.e("s_load_dwordx2 s[60:61], s[0:1], 96")
    a.e("s_load_dwordx2 s[62:63], s[0:1], 32")
    a.e("s_load_dwordx2 s[68:69], s[0:1], 72")
    lane = LANE
    a.e(f"v_lshrrev_b32 v{TMP}, 6, v0")
    a.e(f"v_and_b32 v{lane}, 63, v0")
    a.e("s_nop 0")
    a.e(f"v_readfirstlane_b32 s24, v{TMP}")
    a.e("s_and_b32 s30, s2, 7")
    a.e("s_lshr_b32 s31, s2, 3")
    if OPT.get("mix") == "1":
        a.e("s_and_b32 s32, s31, 1")
        a.e("s_lshl_b32 s33, s30, 2")
        a.e("s_bfe_u32 s34, s31, 0x20001")
        a.e("s_add_u32 s33, s33, s34")
    elif OPT.get("mix") == "2":
        a.e("s_lshr_b32 s32, s31, 5")
        a.e("s_xor_b32 s32, s32, 1")
        a.e("s_lshl_b32 s33, s30, 2")
        a.e("s_and_b32 s34, s31, 3")
        a.e("s_add_u32 s33, s33, s34")
        a.e("s_lshl_b32 s31, s31, 1")
        a.e("s_and_b32 s31, s31, 63")
    elif OPT.get("mix") == "3":
        a.e("s_lshr_b32 s32, s31, 5")
        a.e("s_lshl_b32 s33, s30, 2")
        a.e("s_and_b32 s34, s31, 3")
        a.e("s_add_u32 s33, s33, s34")
        a.e("s_lshl_b32 s31, s31, 1")
        a.e("s_and_b32 s31, s31, 63")
    else:
        a.e("s_lshr_b32 s32, s30, 2")
        a.e("s_and_b32 s33, s30, 3")
        a.e("s_lshl_b32 s33, s33, 3")
        a.e("s_and_b32 s34, s31, 7")
        a.e("s_add_u32 s33, s33, s34")
    a.e("s_lshr_b32 s34, s31, 3")
    a.e("s_mul_i32 s25, s34, 229376")
    a.e("s_lshl_b32 s26, s33, 8")
    a.e("s_lshl_b32 s27, s34, 5")
    a.e("s_add_u32 s27, s27, s33")
    a.e("s_lshl_b32 s27, s27, 17")
    a.e("s_lshl_b32 s28, s32, 3")
    a.e("s_add_u32 s28, s28, s34")
    a.e("s_lshl_b32 s28, s28, 2")
    a.e("s_add_u32 s28, s28, s24")
    a.e("s_lshl_b32 s28, s28, 18")
    a.e("s_lshl_b32 s35, s33, 13")
    a.e("s_add_u32 s28, s28, s35")
    a.e("s_lshl_b32 s29, s24, 12")
    a.e("s_lshl_b32 s36, s24, 11")
    a.e(f"s_mov_b32 s42, {f32bits(CEXP)}")
    a.e("s_add_u32 s43, s33, s34")
    a.e("s_and_b32 s43, s43, 7")
    a.e("s_lshl_b32 s43, s43, 1" if OPT.get("rot") else "s_mov_b32 s43, 0")
    a.e("s_mov_b32 s38, -1"); a.e("s_mov_b32 s39, -1")
    a.e("s_cmp_eq_u32 s24, 3")
    a.e("s_cselect_b32 s38, 0, s38")
    a.e("s_cselect_b32 s39, 0, s39")
    a.e("s_waitcnt lgkmcnt(0)")
    a.e("s_cmp_eq_u32 s32, 0")
    for d, (sa, sb) in ((4, (44, 52)), (12, (46, 54)), (16, (48, 56)), (8, (50, 58)), (76, (62, 68))):
        a.e(f"s_cselect_b32 s{d}, s{sa}, s{sb}")
        a.e(f"s_cselect_b32 s{d+1}, s{sa+1}, s{sb+1}")
    a.e("s_mov_b32 s6, 1835008"); a.e("s_mov_b32 s7, 0x00020000")
    a.e("s_mov_b32 s10, 0x800000"); a.e("s_mov_b32 s11, 0x00020000")
    a.e("s_mov_b32 s14, 0x2000000"); a.e("s_mov_b32 s15, 0x00020000")
    a.e("s_mov_b32 s18, 0x2000000"); a.e("s_mov_b32 s19, 0x00020000")
    a.e("s_mov_b32 s20, s60"); a.e("s_mov_b32 s21, s61")
    a.e("s_mov_b32 s22, 0x1000000"); a.e("s_mov_b32 s23, 0x00020000")
    a.e("s_mov_b32 s78, 0x800000"); a.e("s_mov_b32 s79, 0x00020000")
    if OPT.get("stamp"):
        a.e("s_mov_b32 s64, s60"); a.e("s_mov_b32 s65, s61"); a.e("s_mov_b32 s66, 0x4000000"); a.e("s_mov_b32 s67, 0x00020000")
        a.e("s_lshl_b32 s72, s2, 2"); a.e("s_add_u32 s72, s72, s24"); a.e("s_lshl_b32 s72, s72, 8"); a.e("s_add_u32 s72, s72, 0x2000000")
        a.stamp(0, "s[64:67]", 222)
        a.stamp(12, "s[64:67]", 222, True)
    t0, t1, t2, t3, t4 = TMP, TMP+1, TMP+2, TMP+3, TMP+4
    a.e(f"v_lshrrev_b32 v{t0}, 4, v{lane}")
    a.e(f"v_and_b32 v{t1}, 15, v{lane}")
    a.e(f"v_xor_b32 v{t2}, v{t0}, v{t1}")
    a.e(f"v_lshlrev_b32 v{t3}, 8, v{t0}")
    a.e(f"v_add_u32 v{t3}, s29, v{t3}")
    for i in range(4):
        a.e(f"v_xor_b32 v{t4}, {4*i}, v{t2}")
        a.e(f"v_lshl_add_u32 v{DK+i}, v{t4}, 4, v{t3}")
    a.e(f"v_lshlrev_b32 v{t4}, 2, v{t0}")
    a.e(f"v_xor_b32 v{t4}, v{t4}, v{t1}")
    a.e(f"v_lshl_add_u32 v{DV}, v{t4}, 4, v{t3}")
    a.e("s_lshl_b32 s30, s24, 17")
    a.e(f"v_lshlrev_b32 v{t3}, 13, v{t0}")
    a.e(f"v_add_u32 v{t3}, s30, v{t3}")
    a.e(f"v_lshl_add_u32 v{t3}, v{t4}, 4, v{t3}")
    for i in range(4):
        a.e(f"v_add_u32 v{DW+i}, {i*(4*8192-1024)}, v{t3}")
    a.e(f"v_and_b32 v{t0}, 31, v{lane}")
    a.e(f"v_lshrrev_b32 v{t1}, 5, v{lane}")
    a.e(f"v_bfe_u32 v{t2}, v{t0}, 1, 3")
    a.e(f"v_xor_b32 v{t2}, v{t2}, v{t1}")
    a.e(f"v_lshlrev_b32 v{t2}, 4, v{t2}")
    a.e(f"v_lshl_add_u32 v{t2}, v{t0}, 7, v{t2}")
    a.e(f"s_add_u32 s30, s29, {XL}")
    a.e(f"v_add_u32 v{t2}, s30, v{t2}")
    for s_ in range(4):
        a.e(f"v_xor_b32 v{XRA+s_}, {s_<<5}, v{t2}")
    a.e(f"v_lshrrev_b32 v{t2}, 3, v{lane}")
    a.e(f"v_and_b32 v{t3}, 7, v{lane}")
    a.e("s_lshl_b32 s31, s24, 16")
    a.e(f"v_lshlrev_b32 v{t2}, 11, v{t2}")
    a.e(f"v_add_u32 v{t2}, s31, v{t2}")
    a.e(f"v_lshrrev_b32 v{t4}, 4, v{lane}")
    a.e(f"v_xor_b32 v{t3}, v{t3}, v{t4}")
    for i in range(4):
        a.e(f"v_xor_b32 v{t4}, {(4*i)&7}, v{t3}")
        a.e(f"v_lshl_add_u32 v{t4}, v{t4}, 4, v{t2}")
        a.e(f"v_add_u32 v{XO+i}, {i*(16384-1024)}, v{t4}")
    a.e(f"v_bfe_u32 v{t2}, v{lane}, 2, 2")
    a.e(f"v_bfe_u32 v{t3}, v{lane}, 4, 1")
    a.e(f"v_and_b32 v{t4}, 1, v{lane}")
    a.e(f"v_lshl_add_u32 v{t3}, v{t3}, 1, v{t4}")
    a.e(f"v_lshl_add_u32 v{t3}, v{t2}, 2, v{t3}")
    a.e(f"v_lshlrev_b32 v{t3}, 4, v{t3}")
    a.e(f"v_bfe_u32 v{t4}, v{lane}, 1, 1")
    a.e(f"v_lshl_add_u32 v{t3}, v{t4}, 3, v{t3}")
    a.e(f"v_lshl_add_u32 v{t3}, v{t2}, 8, v{t3}")
    a.e(f"v_lshl_add_u32 v{t3}, v{t1}, 11, v{t3}")
    for T in range(4):
        a.e(f"v_xor_b32 v{VA+T}, {T<<6}, v{t3}")
    a.e(f"v_lshlrev_b32 v{HI1K}, 10, v{t1}")
    a.e(f"v_lshlrev_b32 v{LANE16}, 4, v{lane}")
    a.e(f"v_add_u32 v{WRA}, s29, v{LANE16}")

    def make_ka():
        u0, u1, u2 = 252, 253, 255
        a.e(f"v_and_b32 v{u0}, 31, v{lane}")
        a.e(f"v_lshrrev_b32 v{u1}, 5, v{lane}")
        a.e(f"v_and_b32 v{u2}, 15, v{u0}")
        a.e(f"v_xor_b32 v{u2}, v{u2}, v{u1}")
        a.e(f"v_lshlrev_b32 v{u2}, 4, v{u2}")
        a.e(f"v_lshl_add_u32 v{u2}, v{u0}, 8, v{u2}")
        for s_ in range(8):
            a.e(f"v_xor_b32 v{KA+s_}, {s_<<5}, v{u2}")
    addr_of = {}; dma_id = {}; x_id = {}; state = {}
    fillers = []
    def now_or_later(fs, later):
        for f in fs:
            if later: fillers.append(f)
            else: f()
    def flush_until(cond):
        while not cond():
            fillers.pop(0)()
    NTQ = " nt" if OPT.get("ntq") else ""
    def issue_tile(tile, addr, later=False):
        kind, idx = tile
        addr_of[tile] = addr
        fs = []
        for p in range(2):
            def f(p=p):
                a.e(f"s_add_u32 m0, s29, {addr}")
                if kind == "W":
                    a.e(f"s_add_u32 s31, s26, {idx*64*8192}")
                else:
                    a.e(f"s_add_u32 s31, s27, {idx*16384}")
                for i in (2*p, 2*p+1):
                    if kind == "W":
                        r = a.vm(f"buffer_load_dwordx4 v{DW+i}, s[8:11], s31 offen offset:{i*1024}{NTQ} lds")
                    elif kind == "K":
                        r = a.vm(f"buffer_load_dwordx4 v{DK+i}, s[12:15], s31 offen offset:{i*1024}{NT} lds")
                    else:
                        r = a.vm(f"buffer_load_dwordx4 v{DV}, s[16:19], s31 offen offset:{i*1024}{NT} lds")
                if p == 1: dma_id[tile] = r
            fs.append(f)
        now_or_later(fs, later)
    pre_id = {}
    def issue_pre(tile, slot):
        kind, idx = tile
        a.e(f"s_add_u32 s31, s27, {idx*16384}")
        for i in range(4):
            d = vr(KVP + 16*slot + 4*i, 4)
            if kind == "K":
                pre_id[tile] = a.vm(f"buffer_load_dwordx4 {d}, v{DK+i}, s[12:15], s31 offen offset:{i*1024}{NT}")
            else:
                pre_id[tile] = a.vm(f"buffer_load_dwordx4 {d}, v{DV}, s[16:19], s31 offen offset:{i*1024}{NT}")
    def spill_pre(tile, slot, addr):
        addr_of[tile] = addr
        a.wait(vm=pre_id[tile])
        for i in range(4):
            state["prew", tile] = a.lg(f"ds_write_b128 v{WRA}, {vr(KVP + 16*slot + 4*i, 4)} offset:{addr + i*1024}")
    def issue_x(t, later=False):
        fs = []
        for p in range(2):
            def f(p=p):
                if p == 0 and ("xr", t - 2) in state:
                    a.wait(lg=state["xr", t - 2])
                a.e(f"s_add_u32 m0, s29, {XL + (t%2)*16384}")
                a.e(f"s_add_u32 s37, s25, {t*128}")
                if p == 1: a.e("s_mov_b64 exec, s[38:39]")
                for i in (2*p, 2*p+1):
                    r = a.vm(f"buffer_load_dwordx4 v{XO+i}, s[4:7], s37 offen offset:{i*1024}{NTQ} lds")
                if p == 1:
                    a.e("s_mov_b64 exec, -1")
                    x_id[t] = r
            fs.append(f)
        now_or_later(fs, later)

    cons = [("W", t) for t in range(16)]
    for g in range(4):
        cons += [("K", 2*g), ("K", 2*g+1), ("V", 2*g), ("V", 2*g+1)]
    kv_all = cons[16:]
    pre_tiles = kv_all[:NPRE]
    kvq = kv_all[NPRE:]
    if OPT.get("prio") in ("1", "2"): a.e("s_setprio 2")
    issue_x(0)
    issue_tile(("W", 0), 0)
    issue_x(1)
    issue_tile(("W", 1), 16384)
    issue_tile(("W", 2), 32768)
    PRE_AT = int(OPT.get("preat", -1))
    if PRE_AT < 0:
        for i, tl in enumerate(pre_tiles): issue_pre(tl, i)
    pre_left = list(enumerate(pre_tiles))
    def fill_region(addr, dma_only=False):
        if pre_left and not dma_only:
            i, tl = pre_left.pop(0)
            spill_pre(tl, i, addr)
        elif kvq:
            issue_tile(kvq.pop(0), addr, True)
    def sync(n):
        tile = cons[n]
        drain = (n <= 16)
        if tile in pre_tiles:
            if drain: a.e("s_waitcnt lgkmcnt(0)")
            else: a.wait(lg=state["prew", tile])
        else:
            flush_until(lambda: tile in dma_id)
            w = dma_id[tile]
            if tile[0] == "W":
                flush_until(lambda: n in x_id)
                w = max(w, x_id[n])
            a.wait(vm=w, lg=a.lg_seq if drain else None)
        a.e("s_barrier")
        if n == 0: a.stamp(1, "s[64:67]", 222)
        if n in (2, 4, 6, 8, 10, 12, 14): a.stamp(16 + n // 2, "s[64:67]", 222)
        if PRE_AT >= 0 and PRE_AT <= n < PRE_AT + 2 * NPRE and (n - PRE_AT) % 2 == 0:
            i = (n - PRE_AT) // 2
            fillers.append(lambda i=i: issue_pre(pre_tiles[i], i))
        if 1 <= n <= 13:
            issue_tile(("W", n + 2), addr_of[cons[n-1]], True)
        elif 14 <= n <= 16:
            fill_region(addr_of[cons[n-1]])
        elif n >= 18:
            fill_region(addr_of[cons[n-2]])
        if n == 15: fill_region(XL, True)
        if n == 16: fill_region(XL + 16384, True)

    cur_shift = {"K": 0, "V": 0}
    def adjust(kind, addr):
        regs = range(KA, KA+8) if kind == "K" else range(VA, VA+4)
        want = 65536 if addr >= 65536 else 0
        if cur_shift[kind] != want:
            d = want - cur_shift[kind]
            for r in regs:
                a.e(f"v_add_u32 v{r}, {d & 0xffffffff:#x}, v{r}")
            cur_shift[kind] = want
        return addr - want

    def softmax(g):
        a.stamp(3+2*g, "s[64:67]", 222)
        if OPT.get("prio") == "1": a.e("s_setprio 0")
        a.e("s_nop 7"); a.e("s_nop 5")
        for ch in range(4):
            b = S + 16*ch
            a.e(f"v_max3_f32 v{T0+ch}, v{b}, v{b+1}, v{b+2}")
        for k in range(6):
            for ch in range(4):
                b = S + 16*ch
                a.e(f"v_max3_f32 v{T0+ch}, v{T0+ch}, v{b+3+2*k}, v{b+4+2*k}")
        for ch in range(4):
            a.e(f"v_max_f32 v{T0+ch}, v{T0+ch}, v{S+16*ch+15}")
        a.e(f"v_max3_f32 v{T0}, v{T0}, v{T0+1}, v{T0+2}")
        a.e(f"v_max_f32 v{T0}, v{T0}, v{T0+3}")
        a.e(f"v_mov_b32 v{T0+1}, v{T0}")
        a.e("s_nop 1")
        a.e(f"v_permlane32_swap_b32 v{T0}, v{T0+1}")
        a.e("s_nop 1")
        if g == 0:
            a.e(f"v_max_f32 v{M}, v{T0}, v{T0+1}")
        else:
            a.e(f"v_max3_f32 v{T0}, v{T0}, v{T0+1}, v{M}")
            a.e(f"v_sub_f32 v{T0+1}, v{M}, v{T0}")
            a.e(f"v_mul_f32 v{T0+1}, s42, v{T0+1}")
            a.e(f"v_exp_f32 v{T0+1}, v{T0+1}")
            a.e(f"v_mov_b32 v{M}, v{T0}")
            a.e(f"v_mul_f32 v{L}, v{L}, v{T0+1}")
            for r in range(64):
                a.e(f"v_mul_f32 v{ACC+r}, v{ACC+r}, v{T0+1}")
                if r % 16 == 15 and fillers: fillers.pop(0)()
        a.e(f"v_mul_f32 v{T0}, s42, v{M}")
        for blk in range(8):
            b = S + 8*blk
            for r in range(8):
                a.e(f"v_fma_f32 v{b+r}, v{b+r}, s42, -v{T0}")
            for r in range(8):
                a.e(f"v_exp_f32 v{b+r}, v{b+r}")
            if fillers: fillers.pop(0)()
            if blk == 0:
                for r in range(4):
                    a.e(f"v_add_f32 v{T0+2+r}, v{b+r}, v{b+4+r}")
            else:
                for r in range(8):
                    a.e(f"v_add_f32 v{T0+2+(r&3)}, v{T0+2+(r&3)}, v{b+r}")
            for r in range(4):
                a.e(f"v_cvt_pk_bf16_f32 v{PF+4*blk+r}, v{b+2*r}, v{b+2*r+1}")
        a.e(f"v_add_f32 v{T0+2}, v{T0+2}, v{T0+3}")
        a.e(f"v_add_f32 v{T0+4}, v{T0+4}, v{T0+5}")
        a.e(f"v_add_f32 v{T0+2}, v{T0+2}, v{T0+4}")
        if g == 0:
            a.e(f"v_mov_b32 v{L}, v{T0+2}")
        else:
            a.e(f"v_add_f32 v{L}, v{L}, v{T0+2}")

    def qconv():
        a.stamp(2, "s[64:67]", 222)
        if OPT.get("prio") == "2": a.e("s_setprio 0")
        a.e("s_nop 7"); a.e("s_nop 5")
        for T in range(4):
            for u in range(2):
                for r in range(4):
                    a.e(f"v_cvt_pk_bf16_f32 v{QF+4*(2*T+u)+r}, v{ACC+16*T+8*u+2*r}, v{ACC+16*T+8*u+2*r+1}")
        a.e("s_nop 1")

    items = []
    for n, tile in enumerate(cons):
        kind, idx = tile
        if kind == "W":
            t = idx
            for s in range(4):
                for T in range(4):
                    first = (s == 0 and T == 0)
                    def pre_read(n=n, first=first, t=t):
                        if first:
                            sync(n)
                    def rd(buf, tile=tile, s=s, T=T, t=t):
                        sb = addr_of[tile]
                        if s == 0:
                            state["xr", t] = a.lg(f"ds_read_b128 {vr(XB+(t%2)*16+4*T,4)}, v{XRA+T} offset:{(t%2)*16384}")
                        if s == 2 and T == 0 and t + 2 < 16: issue_x(t + 2, True)
                        a.lg(f"ds_read_b64_tr_b16 {vr(buf,2)}, v{VA+T} offset:{sb + s*4096}")
                        return a.lg(f"ds_read_b64_tr_b16 {vr(buf+2,2)}, v{VA+T} offset:{sb + s*4096 + 1024}")
                    def mm(buf, idx=idx, s=s, T=T, t=t):
                        c = "0" if (idx == 0 and s == 0) else vr(ACC+16*T, 16)
                        a.e(f"v_mfma_f32_32x32x16_bf16 {vr(ACC+16*T,16)}, {vr(buf,4)}, {vr(XB+(t%2)*16+4*s,4)}, {c}")
                    items.append(Item(pre_read, rd, None, mm))
        elif kind == "K":
            jj = idx & 1
            for s in range(8):
                for ks in range(2):
                    first = (s == 0 and ks == 0)
                    def pre_read(n=n, first=first, tile=tile):
                        if first:
                            sync(n)
                            if tile == ("K", 0):
                                flush_until(lambda: not fillers)
                                make_ka()
                            state[tile] = adjust("K", addr_of[tile])
                    def rd(buf, tile=tile, s=s, ks=ks):
                        return a.lg(f"ds_read_b128 {vr(buf,4)}, v{KA+s} offset:{state[tile] + ks*8192}")
                    def pm(idx=idx, first=first):
                        if idx == 0 and first:
                            qconv()
                    def mm(buf, s=s, ks=ks, jj=jj):
                        d = S + 16*(2*jj+ks)
                        c = "0" if s == 0 else vr(d, 16)
                        a.e(f"v_mfma_f32_32x32x16_bf16 {vr(d,16)}, {vr(buf,4)}, {vr(QF+4*s,4)}, {c}")
                    items.append(Item(pre_read, rd, pm, mm))
        else:
            vv = idx & 1
            for u in range(4):
                for T in range(4):
                    first = (u == 0 and T == 0)
                    def pre_read(n=n, first=first, tile=tile, idx=idx):
                        if first:
                            sync(n)
                            if idx == 0:
                                for T_ in range(4):
                                    a.e(f"v_sub_u32 v{VA+T_}, v{VA+T_}, v{HI1K}")
                            state[tile] = adjust("V", addr_of[tile])
                    def rd(buf, tile=tile, u=u, T=T):
                        sb = state[tile]
                        a.lg(f"ds_read_b64_tr_b16 {vr(buf,2)}, v{VA+T} offset:{sb + u*4096}")
                        return a.lg(f"ds_read_b64_tr_b16 {vr(buf+2,2)}, v{VA+T} offset:{sb + u*4096 + 2048}")
                    def pm(idx=idx, first=first):
                        if first and idx % 2 == 0:
                            softmax(idx // 2)
                            if OPT.get("prio") == "1": a.e("s_setprio 2")
                            a.stamp(4+idx, "s[64:67]", 222)
                            a.e("s_nop 1")
                    def mm(buf, idx=idx, u=u, T=T, vv=vv):
                        c = "0" if (idx == 0 and u == 0) else vr(ACC+16*T, 16)
                        a.e(f"v_mfma_f32_32x32x16_bf16 {vr(ACC+16*T,16)}, {vr(buf,4)}, {vr(PF+4*(4*vv+u),4)}, {c}")
                    items.append(Item(pre_read, rd, pm, mm))
    run_pipeline(a, items, AF, NBUF, NRING, fillers)
    assert not fillers

    a.c("---- epilogue")
    a.stamp(11, "s[64:67]", 222)
    a.stamp(13, "s[64:67]", 222, True)
    a.e(f"v_mov_b32 v{T0+1}, v{L}")
    a.e("s_nop 1")
    a.e(f"v_permlane32_swap_b32 v{L}, v{T0+1}")
    a.e("s_nop 1")
    a.e(f"v_add_f32 v{L}, v{L}, v{T0+1}")
    a.e(f"v_rcp_f32 v{L}, v{L}")
    a.e("s_nop 7"); a.e("s_nop 3")
    for r in range(64):
        a.e(f"v_mul_f32 v{ACC+r}, v{ACC+r}, v{L}")
    for T in range(4):
        for u in range(2):
            for r in range(4):
                a.e(f"v_cvt_pk_bf16_f32 v{S+4*(2*T+u)+r}, v{ACC+16*T+8*u+2*r}, v{ACC+16*T+8*u+2*r+1}")
    for T in range(4):
        for u in range(2):
            ks = 2*T + u
            if ks % 4 == 0 and ks > 0:
                a.e("s_add_u32 s28, s28, 4096")
            a.vm(f"buffer_store_dwordx4 {vr(S+4*ks,4)}, v{LANE16}, s[20:23], s28 offen offset:{(ks%4)*1024}")
    if OPT.get("wend", "1") == "1":
        a.e("s_lshl_b32 s31, s33, 3")
        a.e("s_add_u32 s31, s31, s34")
        a.e("s_lshl_b32 s31, s31, 2")
        a.e("s_add_u32 s31, s31, s24")
        a.e(f"v_lshlrev_b32 v{T0}, 3, v{LANE16}")
        a.e("s_lshl_b32 s31, s31, 13")
        a.vm(f"buffer_load_dword v{T0+1}, v{T0}, s[76:79], s31 offen")
    a.label("L_attn_done")
    a.e("s_endpgm")
    return a.text()

def gen_oproj():
    a = Asm()
    NSB = int(OPT.get("nsb", 5))
    NS = int(OPT.get("ns2", 8)); SLOT = 16384
    ACC = 0
    AF = 32
    VA = 64
    DW = 68
    XO = 72
    BF = 80
    NBUF = int(OPT.get("nbuf2", 6)); NRING = 8
    a.label("oproj_kernel")
    a.e("s_cmp_ge_u32 s2, 256")
    a.e("s_cbranch_scc1 L_oproj_done")
    a.e("s_load_dwordx2 s[44:45], s[0:1], 32")
    a.e("s_load_dwordx2 s[46:47], s[0:1], 72")
    a.e("s_load_dwordx2 s[48:49], s[0:1], 80")
    a.e("s_load_dwordx2 s[50:51], s[0:1], 96")
    a.e("v_lshrrev_b32 v73, 6, v0")
    a.e("v_and_b32 v74, 63, v0")
    a.e("s_nop 0")
    a.e("v_readfirstlane_b32 s24, v73")
    a.e("s_and_b32 s30, s2, 7")
    a.e("s_lshr_b32 s31, s2, 3")
    a.e("s_lshr_b32 s32, s30, 2")
    a.e("s_bfe_u32 s33, s30, 0x10001")
    a.e("s_lshl_b32 s33, s33, 2")
    a.e("s_lshr_b32 s34, s31, 3")
    a.e("s_add_u32 s33, s33, s34")
    a.e("s_and_b32 s34, s30, 1")
    a.e("s_lshl_b32 s34, s34, 3")
    a.e("s_and_b32 s35, s31, 7")
    a.e("s_add_u32 s34, s34, s35")
    if OPT.get("map2"):
        a.e("s_lshr_b32 s33, s31, 2")
        a.e("s_and_b32 s34, s30, 3")
        a.e("s_lshl_b32 s34, s34, 2")
        a.e("s_and_b32 s35, s31, 3")
        a.e("s_add_u32 s34, s34, s35")
    a.e("s_lshl_b32 s25, s32, 3")
    a.e("s_add_u32 s25, s25, s33")
    a.e("s_lshl_b32 s25, s25, 2")
    a.e("s_add_u32 s25, s25, s24")
    a.e("s_lshl_b32 s25, s25, 18")
    a.e("s_lshl_b32 s26, s34, 7")
    a.e("s_mul_i32 s28, s33, 458752")
    a.e("s_lshl_b32 s35, s32, 11")
    a.e("s_add_u32 s28, s28, s35")
    a.e("s_add_u32 s28, s28, s26")
    a.e("s_lshl_b32 s29, s24, 12")
    a.e("s_add_u32 s54, s33, s34")
    a.e("s_and_b32 s54, s54, 7")
    a.e("s_lshl_b32 s54, s54, 2" if OPT.get("rot2") else "s_mov_b32 s54, 0")
    a.e("s_mov_b32 s38, -1"); a.e("s_mov_b32 s39, -1")
    a.e("s_cmp_eq_u32 s24, 3")
    a.e("s_cselect_b32 s38, 0xffff, s38")
    a.e("s_cselect_b32 s39, 0xffff, s39")
    a.e("s_waitcnt lgkmcnt(0)")
    a.e("s_cmp_eq_u32 s32, 0")
    a.e("s_cselect_b32 s8, s44, s46")
    a.e("s_cselect_b32 s9, s45, s47")
    a.e("s_mov_b32 s10, 0x800000"); a.e("s_mov_b32 s11, 0x00020000")
    a.e("s_mov_b32 s4, s50"); a.e("s_mov_b32 s5, s51")
    a.e("s_mov_b32 s6, 0x1000000"); a.e("s_mov_b32 s7, 0x00020000")
    a.e("s_mov_b32 s20, s48"); a.e("s_mov_b32 s21, s49")
    a.e("s_mov_b32 s22, 3670016"); a.e("s_mov_b32 s23, 0x00020000")
    lane = 74
    if OPT.get("stamp"):
        a.e("s_mov_b32 s64, s50"); a.e("s_mov_b32 s65, s51"); a.e("s_mov_b32 s66, 0x4000000"); a.e("s_mov_b32 s67, 0x00020000")
        a.e("s_lshl_b32 s72, s2, 2"); a.e("s_add_u32 s72, s72, s24"); a.e("s_lshl_b32 s72, s72, 8"); a.e("s_add_u32 s72, s72, 0x2100000")
        a.stamp(0, "s[64:67]", 75)
        a.stamp(12, "s[64:67]", 75, True)
    a.e(f"v_lshrrev_b32 v75, 3, v{lane}")
    a.e(f"v_and_b32 v76, 7, v{lane}")
    a.e(f"v_bfe_u32 v77, v{lane}, 4, 1")
    a.e("v_lshlrev_b32 v77, 2, v77")
    a.e("v_xor_b32 v76, v76, v77")
    a.e("s_lshl_b32 s30, s24, 16")
    a.e("v_lshlrev_b32 v75, 11, v75")
    a.e("v_add_u32 v75, s30, v75")
    a.e("v_lshl_add_u32 v75, v76, 4, v75")
    for i in range(4):
        a.e(f"v_add_u32 v{DW+i}, {i*(8*2048-1024)}, v75")
    a.e(f"v_lshrrev_b32 v75, 5, v{lane}")
    a.e(f"v_bfe_u32 v76, v{lane}, 2, 2")
    a.e(f"v_bfe_u32 v77, v{lane}, 4, 1")
    a.e(f"v_and_b32 v78, 1, v{lane}")
    a.e("v_lshl_add_u32 v77, v77, 1, v78")
    a.e(f"v_bfe_u32 v78, v{lane}, 3, 1")
    a.e("v_lshl_add_u32 v77, v78, 2, v77")
    a.e("v_lshlrev_b32 v77, 4, v77")
    a.e(f"v_bfe_u32 v78, v{lane}, 1, 1")
    a.e("v_lshl_add_u32 v77, v78, 3, v77")
    a.e("v_lshl_add_u32 v77, v76, 7, v77")
    a.e("v_lshl_add_u32 v77, v75, 10, v77")
    for T in range(2):
        a.e(f"v_xor_b32 v{VA+T}, {T<<6}, v77")
        a.e(f"v_add_u32 v{VA+2+T}, 0x10000, v{VA+T}")
    a.e(f"v_lshlrev_b32 v{XO}, 4, v{lane}")
    a.e(f"v_and_b32 v76, 31, v{lane}")
    a.e("s_lshl_b32 s30, s24, 5")
    a.e("v_add_u32 v76, s30, v76")
    a.e("v_lshlrev_b32 v75, 4, v75")
    a.e("v_lshl_add_u32 v78, v76, 12, v75")
    a.e("v_cmp_gt_u32 vcc, 112, v76")
    a.e("s_nop 1")
    a.e("s_mov_b64 s[40:41], vcc")
    NT_ = 32
    dma_id = {}; b_id = {}
    def issue_tile(t):
        slot = t % NS
        a.e(f"s_add_u32 s30, s29, {slot*SLOT}")
        a.e("s_mov_b32 m0, s30")
        a.e(f"s_add_u32 s31, s54, {t}"); a.e("s_and_b32 s31, s31, 31"); a.e("s_lshl_b32 s31, s31, 18"); a.e("s_add_u32 s31, s31, s26")
        for i in range(4):
            dma_id[t] = a.vm(f"buffer_load_dwordx4 v{DW+i}, s[8:11], s31 offen offset:{i*1024}{' nt' if OPT.get('ntw') else ''} lds")
    def issue_b(t):
        base = BF + (t % NSB) * 32
        a.e("s_mov_b64 exec, s[38:39]")
        for hf in range(2):
            a.e(f"s_add_u32 s31, s54, {t}"); a.e("s_and_b32 s31, s31, 31"); a.e("s_lshl_b32 s31, s31, 13"); a.e("s_add_u32 s31, s31, s25"); a.e(f"s_add_u32 s31, s31, {hf*4096}")
            for s in range(4):
                b_id[t] = a.vm(f"buffer_load_dwordx4 {vr(base+4*(4*hf+s),4)}, v{XO}, s[4:7], s31 offen offset:{s*1024}{' nt' if OPT.get('nto') else ''}")
        a.e("s_mov_b64 exec, -1")
    fillers = []
    TOUCH = OPT.get("touch")
    def touch(part):
        a.e("s_lshr_b32 s52, s2, 3")
        a.e("s_lshl_b32 s52, s52, 2")
        a.e("s_add_u32 s52, s52, s24")
        a.e("s_lshl_b32 s52, s52, 15")
        a.e("s_and_b32 s53, s2, 3")
        a.e("s_lshl_b32 s53, s53, 9")
        a.e("s_add_u32 s52, s52, s53")
        a.e(f"s_add_u32 s52, s52, {part*2048*2048}")
        a.e(f"v_lshrrev_b32 v75, 2, v{lane}")
        a.e(f"v_and_b32 v76, 3, v{lane}")
        a.e("v_lshlrev_b32 v76, 7, v76")
        a.e("v_lshl_add_u32 v75, v75, 11, v76")
        a.vm(f"buffer_load_dword v79, v75, s[8:11], s52 offen{' nt' if TOUCH == 'nt' else ''}")
    if TOUCH: touch(0)
    def queue_tile(t):
        slot = t % NS
        def mk(i):
            def f():
                if i == 0:
                    a.e(f"s_add_u32 s30, s29, {slot*SLOT}")
                    a.e("s_mov_b32 m0, s30")
                    a.e(f"s_add_u32 s36, s54, {t}"); a.e("s_and_b32 s36, s36, 31"); a.e("s_lshl_b32 s36, s36, 18"); a.e("s_add_u32 s36, s36, s26")
                dma_id[t] = a.vm(f"buffer_load_dwordx4 v{DW+i}, s[8:11], s36 offen offset:{i*1024}{' nt' if OPT.get('ntw') else ''} lds")
            return f
        for i in range(4): fillers.append(mk(i))
    def queue_b(t):
        base = BF + (t % NSB) * 32
        def mk(j):
            def f():
                hf, s_ = j // 4, j % 4
                if s_ == 0:
                    a.e(f"s_add_u32 s37, s54, {t}"); a.e("s_and_b32 s37, s37, 31"); a.e("s_lshl_b32 s37, s37, 13"); a.e("s_add_u32 s37, s37, s25"); a.e(f"s_add_u32 s37, s37, {hf*4096}")
                a.e("s_mov_b64 exec, s[38:39]")
                b_id[t] = a.vm(f"buffer_load_dwordx4 {vr(base+4*j,4)}, v{XO}, s[4:7], s37 offen offset:{s_*1024}{' nt' if OPT.get('nto') else ''}")
                a.e("s_mov_b64 exec, -1")
            return f
        for j in range(8): fillers.append(mk(j))
    for t in range(max(NS, NSB - 1)):
        if t < NS: issue_tile(t)
        if t < NSB - 1: issue_b(t)
    items = []
    for t in range(NT_):
        for s in range(8):
            for T in range(2):
                first = (s == 0 and T == 0)
                def pre_read(t=t, first=first):
                    if first:
                        a.c(f"---- step {t}")
                        a.wait(vm=dma_id[t])
                        a.e("s_barrier")
                        if t % 4 == 0: a.stamp(16 + t // 4, "s[64:67]", 75)
                        if TOUCH and t == 4: touch(1)
                        if t >= 2 and t + NS - 2 < NT_: queue_tile(t + NS - 2)
                def rd(buf, t=t, s=s, T=T):
                    sb = (t % NS) * SLOT
                    va = VA + T
                    if sb >= 65536: va += 2; sb -= 65536
                    assert sb < 65536
                    a.lg(f"ds_read_b64_tr_b16 {vr(buf,2)}, v{va} offset:{sb + s*2048}")
                    return a.lg(f"ds_read_b64_tr_b16 {vr(buf+2,2)}, v{va} offset:{sb + s*2048 + 512}")
                def pm(t=t, first=first):
                    if first:
                        a.wait(vm=b_id[t])
                        if t + NSB - 1 < NT_: queue_b(t + NSB - 1)
                def mm(buf, t=t, s=s, T=T):
                    bb = BF + (t % NSB) * 32
                    c = "0" if (t == 0 and s == 0) else vr(ACC+16*T, 16)
                    a.e(f"v_mfma_f32_32x32x16_bf16 {vr(ACC+16*T,16)}, {vr(buf,4)}, {vr(bb+4*s,4)}, {c}")
                items.append(Item(pre_read, rd, pm, mm))
    run_pipeline(a, items, AF, NBUF, NRING, fillers)
    a.stamp(11, "s[64:67]", 75)
    a.stamp(13, "s[64:67]", 75, True)
    a.e("s_nop 7"); a.e("s_nop 5")
    for T in range(2):
        for u in range(2):
            for r in range(4):
                a.e(f"v_cvt_pk_bf16_f32 v{BF+4*(2*T+u)+r}, v{ACC+16*T+8*u+2*r}, v{ACC+16*T+8*u+2*r+1}")
    a.e("s_and_saveexec_b64 s[42:43], s[40:41]")
    a.e("s_cbranch_execz L_oproj_done")
    for T in range(2):
        for u in range(2):
            a.vm(f"buffer_store_dwordx4 {vr(BF+4*(2*T+u),4)}, v78, s[20:23], s28 offen offset:{T*64+u*32}")
    a.label("L_oproj_done")
    a.e("s_endpgm")
    return a.text()

def kd(name, vgpr, sgpr=102):
    return f""".amdhsa_kernel {name}
  .amdhsa_next_free_vgpr {vgpr}
  .amdhsa_next_free_sgpr {sgpr}
  .amdhsa_accum_offset {(vgpr+3)//4*4}
  .amdhsa_group_segment_fixed_size 0
  .amdhsa_kernarg_size 104
  .amdhsa_user_sgpr_count 2
  .amdhsa_user_sgpr_kernarg_segment_ptr 1
  .amdhsa_system_sgpr_workgroup_id_x 1
.end_amdhsa_kernel
"""

LDS2 = 16384 * int(OPT.get("ns2", 8))
hdr = f"""; fused MHA x2: kernel 1 = Q projection + attention per (block, batch, head); kernel 2 = output projection
; @launch kernel=attn_kernel grid=(512,1,1) block=(256,1,1) lds=81920
; @launch kernel=oproj_kernel grid=(256,1,1) block=(256,1,1) lds={LDS2}
.amdgcn_target "amdgcn-amd-amdhsa--gfx950"
.text
"""
body = hdr
for name, fn in (("attn_kernel", gen_attn), ("oproj_kernel", gen_oproj)):
    body += f".globl {name}\n.p2align 8\n.type {name},@function\n" + fn()
body += '.section .rodata,"a"\n.p2align 6\n' + kd("attn_kernel", 256) + ".p2align 6\n" + kd("oproj_kernel", 80 + 32 * int(OPT.get("nsb", 5)))
open(OUT, "w").write(body)
```

```python
import sys, math, struct

OUT = sys.argv[1] if len(sys.argv) > 1 else "out.s"
OPT = dict(x.split("=") for x in sys.argv[2:])

class Asm:
    def __init__(self):
        self.lines = []
        self.vm_seq = 0
        self.lg_seq = 0
    def e(self, s): self.lines.append("    " + s)
    def label(self, s): self.lines.append(s + ":")
    def c(self, s): self.lines.append("    ; " + s)
    def vm(self, s):
        self.e(s); self.vm_seq += 1
        return self.vm_seq
    def lg(self, s):
        self.e(s); self.lg_seq += 1
        return self.lg_seq
    def wait(self, vm=None, lg=None):
        parts = []
        if vm is not None:
            n = self.vm_seq - vm; assert n >= 0
            parts.append(f"vmcnt({min(n, 63)})")
        if lg is not None:
            n = self.lg_seq - lg; assert n >= 0
            parts.append(f"lgkmcnt({min(n, 15)})")
        self.e("s_waitcnt " + " ".join(parts))
    def text(self): return "\n".join(self.lines) + "\n"
    def stamp(self, idx, srd, vtmp, real=False):
        if not OPT.get("stamp"): return
        if OPT.get("stamp") == "2" and idx not in (0, 11, 12, 13): return
        self.e("s_memrealtime s[70:71]" if real else "s_memtime s[70:71]")
        self.e("s_waitcnt lgkmcnt(0)")
        self.e(f"v_mov_b32 v{vtmp}, s70")
        self.e(f"v_mov_b32 v{vtmp+1}, s72")
        self.vm(f"buffer_store_dword v{vtmp}, v{vtmp+1}, {srd}, 0 offen offset:{idx*4}")

def vr(b, n=1):
    return f"v{b}" if n == 1 else f"v[{b}:{b+n-1}]"

SCALE = 128 ** -0.5
CEXP = SCALE * math.log2(math.e)
def f32bits(x): return "0x%08x" % struct.unpack("<I", struct.pack("<f", x))[0]
NT = " nt"

WAITG = int(OPT.get("waitg", 2))
class Item:
    def __init__(self, pre_read=None, reads=None, pre_mfma=None, mfma=None):
        self.pre_read = pre_read
        self.reads = reads
        self.pre_mfma = pre_mfma
        self.mfma = mfma

def run_pipeline(a, items, AF, NBUF, NRING, fillers=None, per=1):
    n = len(items)
    if fillers is None: fillers = []
    ids = {}
    def issue(j):
        it = items[j]
        if it.pre_read: it.pre_read()
        ids[j] = it.reads(AF + 4 * (j % NRING))
    for j in range(min(NBUF, n)):
        issue(j)
    for i in range(n):
        it = items[i]
        if it.pre_mfma: it.pre_mfma()
        if i % WAITG == 0:
            a.wait(lg=ids[min(i + WAITG - 1, n - 1)])
        it.mfma(AF + 4 * (i % NRING))
        for _ in range(per):
            if fillers: fillers.pop(0)()
        if i + NBUF < n:
            issue(i + NBUF)

def gen_attn():
    a = Asm()
    ACC = 0
    S = 64
    QF = 128
    PF = 160
    AF = 192
    NXS = int(OPT.get("nxs", 3))
    XS = 64
    XB = 112
    KVP = 144
    KA = 224
    VA = 232
    DK = 236
    DV = 240
    HI1K = 241; LANE16 = 242
    M = 243; L = 244
    T0 = 245
    DW = 224
    XO = 228
    LANE = 251
    WRA = 254
    XRA = 243
    XWA = 247
    TMP = 192
    NBUF = int(OPT.get("nbuf", 6)); NRING = 7
    NWS = 3
    XL = 49152
    NPRE = int(OPT.get("npre", 3))

    a.label("attn_kernel")
    a.e("s_cmp_ge_u32 s2, 512")
    a.e("s_cbranch_scc1 L_attn_done")
    a.e("s_load_dwordx8 s[44:51], s[0:1], 0")
    a.e("s_load_dwordx8 s[52:59], s[0:1], 40")
    a.e("s_load_dwordx2 s[60:61], s[0:1], 96")
    a.e("s_load_dwordx2 s[62:63], s[0:1], 32")
    a.e("s_load_dwordx2 s[68:69], s[0:1], 72")
    a.e("s_load_dwordx2 s[84:85], s[0:1], 88")
    lane = LANE
    a.e(f"v_lshrrev_b32 v{TMP}, 6, v0")
    a.e(f"v_and_b32 v{lane}, 63, v0")
    a.e("s_nop 0")
    a.e(f"v_readfirstlane_b32 s24, v{TMP}")
    a.e("s_and_b32 s30, s2, 7")
    a.e("s_lshr_b32 s31, s2, 3")
    if OPT.get("mix") == "1":
        a.e("s_and_b32 s32, s31, 1")
        a.e("s_lshl_b32 s33, s30, 2")
        a.e("s_bfe_u32 s34, s31, 0x20001")
        a.e("s_add_u32 s33, s33, s34")
    elif OPT.get("mix") == "2":
        a.e("s_lshr_b32 s32, s31, 5")
        a.e("s_xor_b32 s32, s32, 1")
        a.e("s_lshl_b32 s33, s30, 2")
        a.e("s_and_b32 s34, s31, 3")
        a.e("s_add_u32 s33, s33, s34")
        a.e("s_lshl_b32 s31, s31, 1")
        a.e("s_and_b32 s31, s31, 63")
    elif OPT.get("mix") == "3":
        a.e("s_lshr_b32 s32, s31, 5")
        a.e("s_lshl_b32 s33, s30, 2")
        a.e("s_and_b32 s34, s31, 3")
        a.e("s_add_u32 s33, s33, s34")
        a.e("s_lshl_b32 s31, s31, 1")
        a.e("s_and_b32 s31, s31, 63")
    else:
        a.e("s_lshr_b32 s32, s30, 2")
        a.e("s_and_b32 s33, s30, 3")
        a.e("s_lshl_b32 s33, s33, 3")
        a.e("s_and_b32 s34, s31, 7")
        a.e("s_add_u32 s33, s33, s34")
    a.e("s_lshr_b32 s34, s31, 3")
    a.e("s_mul_i32 s25, s34, 229376")
    a.e("s_lshl_b32 s26, s33, 8")
    a.e("s_lshl_b32 s27, s34, 5")
    a.e("s_add_u32 s27, s27, s33")
    a.e("s_lshl_b32 s27, s27, 17")
    a.e("s_lshl_b32 s28, s32, 3")
    a.e("s_add_u32 s28, s28, s34")
    a.e("s_lshl_b32 s28, s28, 2")
    a.e("s_add_u32 s28, s28, s24")
    a.e("s_lshl_b32 s28, s28, 18")
    a.e("s_lshl_b32 s35, s33, 13")
    a.e("s_add_u32 s28, s28, s35")
    a.e("s_lshl_b32 s29, s24, 12")
    a.e("s_lshl_b32 s36, s24, 11")
    a.e(f"s_mov_b32 s42, {f32bits(CEXP)}")
    a.e("s_add_u32 s43, s33, s34")
    a.e("s_and_b32 s43, s43, 7")
    a.e("s_lshl_b32 s43, s43, 1" if OPT.get("rot") else "s_mov_b32 s43, 0")
    a.e("s_mov_b32 s38, -1"); a.e("s_mov_b32 s39, -1")
    a.e("s_cmp_eq_u32 s24, 3")
    a.e("s_cselect_b32 s38, 0, s38")
    a.e("s_cselect_b32 s39, 0, s39")
    a.e("s_waitcnt lgkmcnt(0)")
    a.e("s_cmp_eq_u32 s32, 0")
    for d, (sa, sb) in ((4, (44, 52)), (12, (46, 54)), (16, (48, 56)), (8, (50, 58)), (76, (62, 68))):
        a.e(f"s_cselect_b32 s{d}, s{sa}, s{sb}")
        a.e(f"s_cselect_b32 s{d+1}, s{sa+1}, s{sb+1}")
    a.e("s_mov_b32 s6, 1835008"); a.e("s_mov_b32 s7, 0x00020000")
    a.e("s_mov_b32 s10, 0x800000"); a.e("s_mov_b32 s11, 0x00020000")
    a.e("s_mov_b32 s14, 0x2000000"); a.e("s_mov_b32 s15, 0x00020000")
    a.e("s_mov_b32 s18, 0x2000000"); a.e("s_mov_b32 s19, 0x00020000")
    a.e("s_mov_b32 s20, s60"); a.e("s_mov_b32 s21, s61")
    a.e("s_mov_b32 s22, 0x1000000"); a.e("s_mov_b32 s23, 0x00020000")
    a.e("s_mov_b32 s78, 0x800000"); a.e("s_mov_b32 s79, 0x00020000")
    a.e("s_mov_b32 s86, 256"); a.e("s_mov_b32 s87, 0x00020000")
    a.e("s_and_b32 s88, s2, 255")
    if OPT.get("stamp"):
        a.e("s_mov_b32 s64, s60"); a.e("s_mov_b32 s65, s61"); a.e("s_mov_b32 s66, 0x4000000"); a.e("s_mov_b32 s67, 0x00020000")
        a.e("s_lshl_b32 s72, s2, 2"); a.e("s_add_u32 s72, s72, s24"); a.e("s_lshl_b32 s72, s72, 8"); a.e("s_add_u32 s72, s72, 0x2000000")
        a.stamp(0, "s[64:67]", 222)
        a.stamp(12, "s[64:67]", 222, True)
    t0, t1, t2, t3, t4 = TMP, TMP+1, TMP+2, TMP+3, TMP+4
    a.e(f"v_lshrrev_b32 v{t0}, 4, v{lane}")
    a.e(f"v_and_b32 v{t1}, 15, v{lane}")
    a.e(f"v_xor_b32 v{t2}, v{t0}, v{t1}")
    a.e(f"v_lshlrev_b32 v{t3}, 8, v{t0}")
    a.e(f"v_add_u32 v{t3}, s29, v{t3}")
    for i in range(4):
        a.e(f"v_xor_b32 v{t4}, {4*i}, v{t2}")
        a.e(f"v_lshl_add_u32 v{DK+i}, v{t4}, 4, v{t3}")
    a.e(f"v_lshlrev_b32 v{t4}, 2, v{t0}")
    a.e(f"v_xor_b32 v{t4}, v{t4}, v{t1}")
    a.e(f"v_lshl_add_u32 v{DV}, v{t4}, 4, v{t3}")
    a.e("s_lshl_b32 s30, s24, 17")
    a.e(f"v_lshlrev_b32 v{t3}, 13, v{t0}")
    a.e(f"v_add_u32 v{t3}, s30, v{t3}")
    a.e(f"v_lshl_add_u32 v{t3}, v{t4}, 4, v{t3}")
    for i in range(4):
        a.e(f"v_add_u32 v{DW+i}, {i*(4*8192-1024)}, v{t3}")
    a.e(f"v_and_b32 v{t0}, 31, v{lane}")
    a.e(f"v_lshrrev_b32 v{t1}, 5, v{lane}")
    a.e(f"v_bfe_u32 v{t2}, v{t0}, 1, 3")
    a.e(f"v_xor_b32 v{t2}, v{t2}, v{t1}")
    a.e(f"v_lshlrev_b32 v{t2}, 4, v{t2}")
    a.e(f"v_lshl_add_u32 v{t2}, v{t0}, 7, v{t2}")
    a.e(f"s_add_u32 s30, s29, {XL}")
    a.e(f"v_add_u32 v{t2}, s30, v{t2}")
    for s_ in range(4):
        a.e(f"v_xor_b32 v{XRA+s_}, {s_<<5}, v{t2}")
    a.e(f"v_lshrrev_b32 v{t2}, 3, v{lane}")
    a.e(f"v_and_b32 v{t3}, 7, v{lane}")
    a.e("s_lshl_b32 s31, s24, 16")
    a.e(f"v_lshlrev_b32 v{t2}, 11, v{t2}")
    a.e(f"v_add_u32 v{t2}, s31, v{t2}")
    a.e(f"v_lshrrev_b32 v{t4}, 4, v{lane}")
    a.e(f"v_xor_b32 v{t3}, v{t3}, v{t4}")
    for i in range(4):
        a.e(f"v_xor_b32 v{t4}, {(4*i)&7}, v{t3}")
        a.e(f"v_lshl_add_u32 v{t4}, v{t4}, 4, v{t2}")
        a.e(f"v_add_u32 v{XO+i}, {i*(16384-1024)}, v{t4}")
    a.e(f"v_bfe_u32 v{t2}, v{lane}, 2, 2")
    a.e(f"v_bfe_u32 v{t3}, v{lane}, 4, 1")
    a.e(f"v_and_b32 v{t4}, 1, v{lane}")
    a.e(f"v_lshl_add_u32 v{t3}, v{t3}, 1, v{t4}")
    a.e(f"v_lshl_add_u32 v{t3}, v{t2}, 2, v{t3}")
    a.e(f"v_lshlrev_b32 v{t3}, 4, v{t3}")
    a.e(f"v_bfe_u32 v{t4}, v{lane}, 1, 1")
    a.e(f"v_lshl_add_u32 v{t3}, v{t4}, 3, v{t3}")
    a.e(f"v_lshl_add_u32 v{t3}, v{t2}, 8, v{t3}")
    a.e(f"v_lshl_add_u32 v{t3}, v{t1}, 11, v{t3}")
    for T in range(4):
        a.e(f"v_xor_b32 v{VA+T}, {T<<6}, v{t3}")
    a.e(f"v_lshlrev_b32 v{HI1K}, 10, v{t1}")
    a.e(f"v_lshlrev_b32 v{LANE16}, 4, v{lane}")
    a.e(f"v_add_u32 v{WRA}, s29, v{LANE16}")

    def make_ka():
        u0, u1, u2 = 252, 253, 255
        a.e(f"v_and_b32 v{u0}, 31, v{lane}")
        a.e(f"v_lshrrev_b32 v{u1}, 5, v{lane}")
        a.e(f"v_and_b32 v{u2}, 15, v{u0}")
        a.e(f"v_xor_b32 v{u2}, v{u2}, v{u1}")
        a.e(f"v_lshlrev_b32 v{u2}, 4, v{u2}")
        a.e(f"v_lshl_add_u32 v{u2}, v{u0}, 8, v{u2}")
        for s_ in range(8):
            a.e(f"v_xor_b32 v{KA+s_}, {s_<<5}, v{u2}")
    addr_of = {}; dma_id = {}; x_id = {}; state = {}
    fillers = []
    def now_or_later(fs, later):
        for f in fs:
            if later: fillers.append(f)
            else: f()
    def flush_until(cond):
        while not cond():
            fillers.pop(0)()
    NTQ = " nt" if OPT.get("ntq") else ""
    def issue_tile(tile, addr, later=False):
        kind, idx = tile
        addr_of[tile] = addr
        fs = []
        for p in range(2):
            def f(p=p):
                a.e(f"s_add_u32 m0, s29, {addr}")
                if kind == "W":
                    a.e(f"s_add_u32 s31, s26, {idx*64*8192}")
                else:
                    a.e(f"s_add_u32 s31, s27, {idx*16384}")
                for i in (2*p, 2*p+1):
                    if kind == "W":
                        r = a.vm(f"buffer_load_dwordx4 v{DW+i}, s[8:11], s31 offen offset:{i*1024}{NTQ} lds")
                    elif kind == "K":
                        r = a.vm(f"buffer_load_dwordx4 v{DK+i}, s[12:15], s31 offen offset:{i*1024}{NT} lds")
                    else:
                        r = a.vm(f"buffer_load_dwordx4 v{DV}, s[16:19], s31 offen offset:{i*1024}{NT} lds")
                if p == 1: dma_id[tile] = r
            fs.append(f)
        now_or_later(fs, later)
    pre_id = {}
    def issue_pre(tile, slot):
        kind, idx = tile
        a.e(f"s_add_u32 s31, s27, {idx*16384}")
        for i in range(4):
            d = vr(KVP + 16*slot + 4*i, 4)
            if kind == "K":
                pre_id[tile] = a.vm(f"buffer_load_dwordx4 {d}, v{DK+i}, s[12:15], s31 offen offset:{i*1024}{NT}")
            else:
                pre_id[tile] = a.vm(f"buffer_load_dwordx4 {d}, v{DV}, s[16:19], s31 offen offset:{i*1024}{NT}")
    def spill_pre(tile, slot, addr):
        addr_of[tile] = addr
        a.wait(vm=pre_id[tile])
        for i in range(4):
            state["prew", tile] = a.lg(f"ds_write_b128 v{WRA}, {vr(KVP + 16*slot + 4*i, 4)} offset:{addr + i*1024}")
    def issue_x(t, later=False):
        fs = []
        for p in range(2):
            def f(p=p):
                if p == 0 and ("xr", t - 2) in state:
                    a.wait(lg=state["xr", t - 2])
                a.e(f"s_add_u32 m0, s29, {XL + (t%2)*16384}")
                a.e(f"s_add_u32 s37, s25, {t*128}")
                if p == 1: a.e("s_mov_b64 exec, s[38:39]")
                for i in (2*p, 2*p+1):
                    r = a.vm(f"buffer_load_dwordx4 v{XO+i}, s[4:7], s37 offen offset:{i*1024}{NTQ} lds")
                if p == 1:
                    a.e("s_mov_b64 exec, -1")
                    x_id[t] = r
            fs.append(f)
        now_or_later(fs, later)

    cons = [("W", t) for t in range(16)]
    for g in range(4):
        cons += [("K", 2*g), ("K", 2*g+1), ("V", 2*g), ("V", 2*g+1)]
    kv_all = cons[16:]
    pre_tiles = kv_all[:NPRE]
    kvq = kv_all[NPRE:]
    if OPT.get("prio") in ("1", "2"): a.e("s_setprio 2")
    issue_x(0)
    issue_tile(("W", 0), 0)
    issue_x(1)
    issue_tile(("W", 1), 16384)
    issue_tile(("W", 2), 32768)
    PRE_AT = int(OPT.get("preat", -1))
    if PRE_AT < 0:
        for i, tl in enumerate(pre_tiles): issue_pre(tl, i)
    GATE = int(OPT.get("gate", -1))
    def gate_wait():
        a.e("s_cmp_lt_u32 s2, 256")
        a.e("s_cbranch_scc1 L_gate_done")
        a.e("s_mov_b32 s89, 0")
        a.e("v_mov_b32 v252, 0")
        a.label("L_gate_poll")
        a.e("buffer_load_ubyte v253, v252, s[84:87], s88 offen sc0 sc1")
        a.e("s_waitcnt vmcnt(0)")
        a.e("v_readfirstlane_b32 s90, v253")
        a.e("s_nop 3")
        a.e("s_cmp_lg_u32 s90, 0")
        a.e("s_cbranch_scc1 L_gate_done")
        a.e("s_sleep 8")
        a.e("s_add_u32 s89, s89, 1")
        a.e("s_cmp_lt_u32 s89, 0x4000")
        a.e("s_cbranch_scc1 L_gate_poll")
        a.label("L_gate_done")
    def gate_set():
        a.e("s_cmp_ge_u32 s2, 256")
        a.e("s_cbranch_scc1 L_gate_set_done")
        a.e("s_cmp_lg_u32 s24, 0")
        a.e("s_cbranch_scc1 L_gate_set_done")
        a.e("v_mov_b32 v252, 0")
        a.e("v_mov_b32 v253, 1")
        a.e("s_mov_b64 exec, 1")
        a.e("buffer_store_byte v253, v252, s[84:87], s88 offen sc0 sc1")
        a.e("s_mov_b64 exec, -1")
        a.e("s_waitcnt vmcnt(0)")
        a.label("L_gate_set_done")
    if GATE >= 0: gate_wait()
    pre_left = list(enumerate(pre_tiles))
    def fill_region(addr, dma_only=False):
        if pre_left and not dma_only:
            i, tl = pre_left.pop(0)
            spill_pre(tl, i, addr)
        elif kvq:
            issue_tile(kvq.pop(0), addr, True)
    def sync(n):
        tile = cons[n]
        drain = (n <= 16)
        if tile in pre_tiles:
            if drain: a.e("s_waitcnt lgkmcnt(0)")
            else: a.wait(lg=state["prew", tile])
        else:
            flush_until(lambda: tile in dma_id)
            w = dma_id[tile]
            if tile[0] == "W":
                flush_until(lambda: n in x_id)
                w = max(w, x_id[n])
            a.wait(vm=w, lg=a.lg_seq if drain else None)
        a.e("s_barrier")
        if n == GATE: gate_set()
        if n == 0: a.stamp(1, "s[64:67]", 222)
        if n in (2, 4, 6, 8, 10, 12, 14): a.stamp(16 + n // 2, "s[64:67]", 222)
        if PRE_AT >= 0 and PRE_AT <= n < PRE_AT + 2 * NPRE and (n - PRE_AT) % 2 == 0:
            i = (n - PRE_AT) // 2
            fillers.append(lambda i=i: issue_pre(pre_tiles[i], i))
        if 1 <= n <= 13:
            issue_tile(("W", n + 2), addr_of[cons[n-1]], True)
        elif 14 <= n <= 16:
            fill_region(addr_of[cons[n-1]])
        elif n >= 18:
            fill_region(addr_of[cons[n-2]])
        if n == 15: fill_region(XL, True)
        if n == 16: fill_region(XL + 16384, True)

    cur_shift = {"K": 0, "V": 0}
    def adjust(kind, addr):
        regs = range(KA, KA+8) if kind == "K" else range(VA, VA+4)
        want = 65536 if addr >= 65536 else 0
        if cur_shift[kind] != want:
            d = want - cur_shift[kind]
            for r in regs:
                a.e(f"v_add_u32 v{r}, {d & 0xffffffff:#x}, v{r}")
            cur_shift[kind] = want
        return addr - want

    def softmax(g):
        a.stamp(3+2*g, "s[64:67]", 222)
        if OPT.get("prio") == "1": a.e("s_setprio 0")
        a.e("s_nop 7"); a.e("s_nop 5")
        for ch in range(4):
            b = S + 16*ch
            a.e(f"v_max3_f32 v{T0+ch}, v{b}, v{b+1}, v{b+2}")
        for k in range(6):
            for ch in range(4):
                b = S + 16*ch
                a.e(f"v_max3_f32 v{T0+ch}, v{T0+ch}, v{b+3+2*k}, v{b+4+2*k}")
        for ch in range(4):
            a.e(f"v_max_f32 v{T0+ch}, v{T0+ch}, v{S+16*ch+15}")
        a.e(f"v_max3_f32 v{T0}, v{T0}, v{T0+1}, v{T0+2}")
        a.e(f"v_max_f32 v{T0}, v{T0}, v{T0+3}")
        a.e(f"v_mov_b32 v{T0+1}, v{T0}")
        a.e("s_nop 1")
        a.e(f"v_permlane32_swap_b32 v{T0}, v{T0+1}")
        a.e("s_nop 1")
        if g == 0:
            a.e(f"v_max_f32 v{M}, v{T0}, v{T0+1}")
        else:
            a.e(f"v_max3_f32 v{T0}, v{T0}, v{T0+1}, v{M}")
            a.e(f"v_sub_f32 v{T0+1}, v{M}, v{T0}")
            a.e(f"v_mul_f32 v{T0+1}, s42, v{T0+1}")
            a.e(f"v_exp_f32 v{T0+1}, v{T0+1}")
            a.e(f"v_mov_b32 v{M}, v{T0}")
            a.e(f"v_mul_f32 v{L}, v{L}, v{T0+1}")
            for r in range(64):
                a.e(f"v_mul_f32 v{ACC+r}, v{ACC+r}, v{T0+1}")
                if r % 16 == 15 and fillers: fillers.pop(0)()
        a.e(f"v_mul_f32 v{T0}, s42, v{M}")
        for blk in range(8):
            b = S + 8*blk
            for r in range(8):
                a.e(f"v_fma_f32 v{b+r}, v{b+r}, s42, -v{T0}")
            for r in range(8):
                a.e(f"v_exp_f32 v{b+r}, v{b+r}")
            if fillers: fillers.pop(0)()
            if blk == 0:
                for r in range(4):
                    a.e(f"v_add_f32 v{T0+2+r}, v{b+r}, v{b+4+r}")
            else:
                for r in range(8):
                    a.e(f"v_add_f32 v{T0+2+(r&3)}, v{T0+2+(r&3)}, v{b+r}")
            for r in range(4):
                a.e(f"v_cvt_pk_bf16_f32 v{PF+4*blk+r}, v{b+2*r}, v{b+2*r+1}")
        a.e(f"v_add_f32 v{T0+2}, v{T0+2}, v{T0+3}")
        a.e(f"v_add_f32 v{T0+4}, v{T0+4}, v{T0+5}")
        a.e(f"v_add_f32 v{T0+2}, v{T0+2}, v{T0+4}")
        if g == 0:
            a.e(f"v_mov_b32 v{L}, v{T0+2}")
        else:
            a.e(f"v_add_f32 v{L}, v{L}, v{T0+2}")

    def qconv():
        a.stamp(2, "s[64:67]", 222)
        if OPT.get("prio") == "2": a.e("s_setprio 0")
        a.e("s_nop 7"); a.e("s_nop 5")
        for T in range(4):
            for u in range(2):
                for r in range(4):
                    a.e(f"v_cvt_pk_bf16_f32 v{QF+4*(2*T+u)+r}, v{ACC+16*T+8*u+2*r}, v{ACC+16*T+8*u+2*r+1}")
        a.e("s_nop 1")

    items = []
    for n, tile in enumerate(cons):
        kind, idx = tile
        if kind == "W":
            t = idx
            for s in range(4):
                for T in range(4):
                    first = (s == 0 and T == 0)
                    def pre_read(n=n, first=first, t=t):
                        if first:
                            sync(n)
                    def rd(buf, tile=tile, s=s, T=T, t=t):
                        sb = addr_of[tile]
                        if s == 0:
                            state["xr", t] = a.lg(f"ds_read_b128 {vr(XB+(t%2)*16+4*T,4)}, v{XRA+T} offset:{(t%2)*16384}")
                        if s == 2 and T == 0 and t + 2 < 16: issue_x(t + 2, True)
                        a.lg(f"ds_read_b64_tr_b16 {vr(buf,2)}, v{VA+T} offset:{sb + s*4096}")
                        return a.lg(f"ds_read_b64_tr_b16 {vr(buf+2,2)}, v{VA+T} offset:{sb + s*4096 + 1024}")
                    def mm(buf, idx=idx, s=s, T=T, t=t):
                        c = "0" if (idx == 0 and s == 0) else vr(ACC+16*T, 16)
                        a.e(f"v_mfma_f32_32x32x16_bf16 {vr(ACC+16*T,16)}, {vr(buf,4)}, {vr(XB+(t%2)*16+4*s,4)}, {c}")
                    items.append(Item(pre_read, rd, None, mm))
        elif kind == "K":
            jj = idx & 1
            for s in range(8):
                for ks in range(2):
                    first = (s == 0 and ks == 0)
                    def pre_read(n=n, first=first, tile=tile):
                        if first:
                            sync(n)
                            if tile == ("K", 0):
                                flush_until(lambda: not fillers)
                                make_ka()
                            state[tile] = adjust("K", addr_of[tile])
                    def rd(buf, tile=tile, s=s, ks=ks):
                        return a.lg(f"ds_read_b128 {vr(buf,4)}, v{KA+s} offset:{state[tile] + ks*8192}")
                    def pm(idx=idx, first=first):
                        if idx == 0 and first:
                            qconv()
                    def mm(buf, s=s, ks=ks, jj=jj):
                        d = S + 16*(2*jj+ks)
                        c = "0" if s == 0 else vr(d, 16)
                        a.e(f"v_mfma_f32_32x32x16_bf16 {vr(d,16)}, {vr(buf,4)}, {vr(QF+4*s,4)}, {c}")
                    items.append(Item(pre_read, rd, pm, mm))
        else:
            vv = idx & 1
            for u in range(4):
                for T in range(4):
                    first = (u == 0 and T == 0)
                    def pre_read(n=n, first=first, tile=tile, idx=idx):
                        if first:
                            sync(n)
                            if idx == 0:
                                for T_ in range(4):
                                    a.e(f"v_sub_u32 v{VA+T_}, v{VA+T_}, v{HI1K}")
                            state[tile] = adjust("V", addr_of[tile])
                    def rd(buf, tile=tile, u=u, T=T):
                        sb = state[tile]
                        a.lg(f"ds_read_b64_tr_b16 {vr(buf,2)}, v{VA+T} offset:{sb + u*4096}")
                        return a.lg(f"ds_read_b64_tr_b16 {vr(buf+2,2)}, v{VA+T} offset:{sb + u*4096 + 2048}")
                    def pm(idx=idx, first=first):
                        if first and idx % 2 == 0:
                            softmax(idx // 2)
                            if OPT.get("prio") == "1": a.e("s_setprio 2")
                            a.stamp(4+idx, "s[64:67]", 222)
                            a.e("s_nop 1")
                    def mm(buf, idx=idx, u=u, T=T, vv=vv):
                        c = "0" if (idx == 0 and u == 0) else vr(ACC+16*T, 16)
                        a.e(f"v_mfma_f32_32x32x16_bf16 {vr(ACC+16*T,16)}, {vr(buf,4)}, {vr(PF+4*(4*vv+u),4)}, {c}")
                    items.append(Item(pre_read, rd, pm, mm))
    run_pipeline(a, items, AF, NBUF, NRING, fillers)
    assert not fillers

    a.c("---- epilogue")
    a.stamp(11, "s[64:67]", 222)
    a.stamp(13, "s[64:67]", 222, True)
    a.e(f"v_mov_b32 v{T0+1}, v{L}")
    a.e("s_nop 1")
    a.e(f"v_permlane32_swap_b32 v{L}, v{T0+1}")
    a.e("s_nop 1")
    a.e(f"v_add_f32 v{L}, v{L}, v{T0+1}")
    a.e(f"v_rcp_f32 v{L}, v{L}")
    a.e("s_nop 7"); a.e("s_nop 3")
    for r in range(64):
        a.e(f"v_mul_f32 v{ACC+r}, v{ACC+r}, v{L}")
    for T in range(4):
        for u in range(2):
            for r in range(4):
                a.e(f"v_cvt_pk_bf16_f32 v{S+4*(2*T+u)+r}, v{ACC+16*T+8*u+2*r}, v{ACC+16*T+8*u+2*r+1}")
    for T in range(4):
        for u in range(2):
            ks = 2*T + u
            if ks % 4 == 0 and ks > 0:
                a.e("s_add_u32 s28, s28, 4096")
            a.vm(f"buffer_store_dwordx4 {vr(S+4*ks,4)}, v{LANE16}, s[20:23], s28 offen offset:{(ks%4)*1024}")
    if OPT.get("wend", "1") == "1":
        a.e("s_lshl_b32 s31, s33, 3")
        a.e("s_add_u32 s31, s31, s34")
        a.e("s_lshl_b32 s31, s31, 2")
        a.e("s_add_u32 s31, s31, s24")
        a.e(f"v_lshlrev_b32 v{T0}, 3, v{LANE16}")
        a.e("s_lshl_b32 s31, s31, 13")
        a.vm(f"buffer_load_dword v{T0+1}, v{T0}, s[76:79], s31 offen")
    a.label("L_attn_done")
    a.e("s_endpgm")
    return a.text()

def gen_oproj():
    a = Asm()
    NSB = int(OPT.get("nsb", 5))
    NS = int(OPT.get("ns2", 8)); SLOT = 16384
    ACC = 0
    AF = 32
    VA = 64
    DW = 68
    XO = 72
    BF = 80
    NBUF = int(OPT.get("nbuf2", 6)); NRING = 8
    a.label("oproj_kernel")
    a.e("s_cmp_ge_u32 s2, 256")
    a.e("s_cbranch_scc1 L_oproj_done")
    a.e("s_load_dwordx2 s[44:45], s[0:1], 32")
    a.e("s_load_dwordx2 s[46:47], s[0:1], 72")
    a.e("s_load_dwordx2 s[48:49], s[0:1], 80")
    a.e("s_load_dwordx2 s[50:51], s[0:1], 96")
    a.e("v_lshrrev_b32 v73, 6, v0")
    a.e("v_and_b32 v74, 63, v0")
    a.e("s_nop 0")
    a.e("v_readfirstlane_b32 s24, v73")
    a.e("s_and_b32 s30, s2, 7")
    a.e("s_lshr_b32 s31, s2, 3")
    a.e("s_lshr_b32 s32, s30, 2")
    a.e("s_bfe_u32 s33, s30, 0x10001")
    a.e("s_lshl_b32 s33, s33, 2")
    a.e("s_lshr_b32 s34, s31, 3")
    a.e("s_add_u32 s33, s33, s34")
    a.e("s_and_b32 s34, s30, 1")
    a.e("s_lshl_b32 s34, s34, 3")
    a.e("s_and_b32 s35, s31, 7")
    a.e("s_add_u32 s34, s34, s35")
    if OPT.get("map2"):
        a.e("s_lshr_b32 s33, s31, 2")
        a.e("s_and_b32 s34, s30, 3")
        a.e("s_lshl_b32 s34, s34, 2")
        a.e("s_and_b32 s35, s31, 3")
        a.e("s_add_u32 s34, s34, s35")
    a.e("s_lshl_b32 s25, s32, 3")
    a.e("s_add_u32 s25, s25, s33")
    a.e("s_lshl_b32 s25, s25, 2")
    a.e("s_add_u32 s25, s25, s24")
    a.e("s_lshl_b32 s25, s25, 18")
    a.e("s_lshl_b32 s26, s34, 7")
    a.e("s_mul_i32 s28, s33, 458752")
    a.e("s_lshl_b32 s35, s32, 11")
    a.e("s_add_u32 s28, s28, s35")
    a.e("s_add_u32 s28, s28, s26")
    a.e("s_lshl_b32 s29, s24, 12")
    a.e("s_add_u32 s54, s33, s34")
    a.e("s_and_b32 s54, s54, 7")
    a.e("s_lshl_b32 s54, s54, 2" if OPT.get("rot2") else "s_mov_b32 s54, 0")
    a.e("s_mov_b32 s38, -1"); a.e("s_mov_b32 s39, -1")
    a.e("s_cmp_eq_u32 s24, 3")
    a.e("s_cselect_b32 s38, 0xffff, s38")
    a.e("s_cselect_b32 s39, 0xffff, s39")
    a.e("s_waitcnt lgkmcnt(0)")
    a.e("s_cmp_eq_u32 s32, 0")
    a.e("s_cselect_b32 s8, s44, s46")
    a.e("s_cselect_b32 s9, s45, s47")
    a.e("s_mov_b32 s10, 0x800000"); a.e("s_mov_b32 s11, 0x00020000")
    a.e("s_mov_b32 s4, s50"); a.e("s_mov_b32 s5, s51")
    a.e("s_mov_b32 s6, 0x1000000"); a.e("s_mov_b32 s7, 0x00020000")
    a.e("s_mov_b32 s20, s48"); a.e("s_mov_b32 s21, s49")
    a.e("s_mov_b32 s22, 3670016"); a.e("s_mov_b32 s23, 0x00020000")
    lane = 74
    if OPT.get("stamp"):
        a.e("s_mov_b32 s64, s50"); a.e("s_mov_b32 s65, s51"); a.e("s_mov_b32 s66, 0x4000000"); a.e("s_mov_b32 s67, 0x00020000")
        a.e("s_lshl_b32 s72, s2, 2"); a.e("s_add_u32 s72, s72, s24"); a.e("s_lshl_b32 s72, s72, 8"); a.e("s_add_u32 s72, s72, 0x2100000")
        a.stamp(0, "s[64:67]", 75)
        a.stamp(12, "s[64:67]", 75, True)
    a.e(f"v_lshrrev_b32 v75, 3, v{lane}")
    a.e(f"v_and_b32 v76, 7, v{lane}")
    a.e(f"v_bfe_u32 v77, v{lane}, 4, 1")
    a.e("v_lshlrev_b32 v77, 2, v77")
    a.e("v_xor_b32 v76, v76, v77")
    a.e("s_lshl_b32 s30, s24, 16")
    a.e("v_lshlrev_b32 v75, 11, v75")
    a.e("v_add_u32 v75, s30, v75")
    a.e("v_lshl_add_u32 v75, v76, 4, v75")
    for i in range(4):
        a.e(f"v_add_u32 v{DW+i}, {i*(8*2048-1024)}, v75")
    a.e(f"v_lshrrev_b32 v75, 5, v{lane}")
    a.e(f"v_bfe_u32 v76, v{lane}, 2, 2")
    a.e(f"v_bfe_u32 v77, v{lane}, 4, 1")
    a.e(f"v_and_b32 v78, 1, v{lane}")
    a.e("v_lshl_add_u32 v77, v77, 1, v78")
    a.e(f"v_bfe_u32 v78, v{lane}, 3, 1")
    a.e("v_lshl_add_u32 v77, v78, 2, v77")
    a.e("v_lshlrev_b32 v77, 4, v77")
    a.e(f"v_bfe_u32 v78, v{lane}, 1, 1")
    a.e("v_lshl_add_u32 v77, v78, 3, v77")
    a.e("v_lshl_add_u32 v77, v76, 7, v77")
    a.e("v_lshl_add_u32 v77, v75, 10, v77")
    for T in range(2):
        a.e(f"v_xor_b32 v{VA+T}, {T<<6}, v77")
        a.e(f"v_add_u32 v{VA+2+T}, 0x10000, v{VA+T}")
    a.e(f"v_lshlrev_b32 v{XO}, 4, v{lane}")
    a.e(f"v_and_b32 v76, 31, v{lane}")
    a.e("s_lshl_b32 s30, s24, 5")
    a.e("v_add_u32 v76, s30, v76")
    a.e("v_lshlrev_b32 v75, 4, v75")
    a.e("v_lshl_add_u32 v78, v76, 12, v75")
    a.e("v_cmp_gt_u32 vcc, 112, v76")
    a.e("s_nop 1")
    a.e("s_mov_b64 s[40:41], vcc")
    NT_ = 32
    dma_id = {}; b_id = {}
    def issue_tile(t):
        slot = t % NS
        a.e(f"s_add_u32 s30, s29, {slot*SLOT}")
        a.e("s_mov_b32 m0, s30")
        a.e(f"s_add_u32 s31, s54, {t}"); a.e("s_and_b32 s31, s31, 31"); a.e("s_lshl_b32 s31, s31, 18"); a.e("s_add_u32 s31, s31, s26")
        for i in range(4):
            dma_id[t] = a.vm(f"buffer_load_dwordx4 v{DW+i}, s[8:11], s31 offen offset:{i*1024}{' nt' if OPT.get('ntw') else ''} lds")
    def issue_b(t):
        base = BF + (t % NSB) * 32
        a.e("s_mov_b64 exec, s[38:39]")
        for hf in range(2):
            a.e(f"s_add_u32 s31, s54, {t}"); a.e("s_and_b32 s31, s31, 31"); a.e("s_lshl_b32 s31, s31, 13"); a.e("s_add_u32 s31, s31, s25"); a.e(f"s_add_u32 s31, s31, {hf*4096}")
            for s in range(4):
                b_id[t] = a.vm(f"buffer_load_dwordx4 {vr(base+4*(4*hf+s),4)}, v{XO}, s[4:7], s31 offen offset:{s*1024}{' nt' if OPT.get('nto') else ''}")
        a.e("s_mov_b64 exec, -1")
    fillers = []
    TOUCH = OPT.get("touch")
    def touch(part):
        a.e("s_lshr_b32 s52, s2, 3")
        a.e("s_lshl_b32 s52, s52, 2")
        a.e("s_add_u32 s52, s52, s24")
        a.e("s_lshl_b32 s52, s52, 15")
        a.e("s_and_b32 s53, s2, 3")
        a.e("s_lshl_b32 s53, s53, 9")
        a.e("s_add_u32 s52, s52, s53")
        a.e(f"s_add_u32 s52, s52, {part*2048*2048}")
        a.e(f"v_lshrrev_b32 v75, 2, v{lane}")
        a.e(f"v_and_b32 v76, 3, v{lane}")
        a.e("v_lshlrev_b32 v76, 7, v76")
        a.e("v_lshl_add_u32 v75, v75, 11, v76")
        a.vm(f"buffer_load_dword v79, v75, s[8:11], s52 offen{' nt' if TOUCH == 'nt' else ''}")
    if TOUCH: touch(0)
    def queue_tile(t):
        slot = t % NS
        def mk(i):
            def f():
                if i == 0:
                    a.e(f"s_add_u32 s30, s29, {slot*SLOT}")
                    a.e("s_mov_b32 m0, s30")
                    a.e(f"s_add_u32 s36, s54, {t}"); a.e("s_and_b32 s36, s36, 31"); a.e("s_lshl_b32 s36, s36, 18"); a.e("s_add_u32 s36, s36, s26")
                dma_id[t] = a.vm(f"buffer_load_dwordx4 v{DW+i}, s[8:11], s36 offen offset:{i*1024}{' nt' if OPT.get('ntw') else ''} lds")
            return f
        for i in range(4): fillers.append(mk(i))
    def queue_b(t):
        base = BF + (t % NSB) * 32
        def mk(j):
            def f():
                hf, s_ = j // 4, j % 4
                if s_ == 0:
                    a.e(f"s_add_u32 s37, s54, {t}"); a.e("s_and_b32 s37, s37, 31"); a.e("s_lshl_b32 s37, s37, 13"); a.e("s_add_u32 s37, s37, s25"); a.e(f"s_add_u32 s37, s37, {hf*4096}")
                a.e("s_mov_b64 exec, s[38:39]")
                b_id[t] = a.vm(f"buffer_load_dwordx4 {vr(base+4*j,4)}, v{XO}, s[4:7], s37 offen offset:{s_*1024}{' nt' if OPT.get('nto') else ''}")
                a.e("s_mov_b64 exec, -1")
            return f
        for j in range(8): fillers.append(mk(j))
    for t in range(max(NS, NSB - 1)):
        if t < NS: issue_tile(t)
        if t < NSB - 1: issue_b(t)
    items = []
    for t in range(NT_):
        for s in range(8):
            for T in range(2):
                first = (s == 0 and T == 0)
                def pre_read(t=t, first=first):
                    if first:
                        a.c(f"---- step {t}")
                        a.wait(vm=dma_id[t])
                        a.e("s_barrier")
                        if t % 4 == 0: a.stamp(16 + t // 4, "s[64:67]", 75)
                        if TOUCH and t == 4: touch(1)
                        if t >= 2 and t + NS - 2 < NT_: queue_tile(t + NS - 2)
                def rd(buf, t=t, s=s, T=T):
                    sb = (t % NS) * SLOT
                    va = VA + T
                    if sb >= 65536: va += 2; sb -= 65536
                    assert sb < 65536
                    a.lg(f"ds_read_b64_tr_b16 {vr(buf,2)}, v{va} offset:{sb + s*2048}")
                    return a.lg(f"ds_read_b64_tr_b16 {vr(buf+2,2)}, v{va} offset:{sb + s*2048 + 512}")
                def pm(t=t, first=first):
                    if first:
                        a.wait(vm=b_id[t])
                        if t + NSB - 1 < NT_: queue_b(t + NSB - 1)
                def mm(buf, t=t, s=s, T=T):
                    bb = BF + (t % NSB) * 32
                    c = "0" if (t == 0 and s == 0) else vr(ACC+16*T, 16)
                    a.e(f"v_mfma_f32_32x32x16_bf16 {vr(ACC+16*T,16)}, {vr(buf,4)}, {vr(bb+4*s,4)}, {c}")
                items.append(Item(pre_read, rd, pm, mm))
    run_pipeline(a, items, AF, NBUF, NRING, fillers)
    a.stamp(11, "s[64:67]", 75)
    a.stamp(13, "s[64:67]", 75, True)
    a.e("s_nop 7"); a.e("s_nop 5")
    for T in range(2):
        for u in range(2):
            for r in range(4):
                a.e(f"v_cvt_pk_bf16_f32 v{BF+4*(2*T+u)+r}, v{ACC+16*T+8*u+2*r}, v{ACC+16*T+8*u+2*r+1}")
    a.e("s_and_saveexec_b64 s[42:43], s[40:41]")
    a.e("s_cbranch_execz L_oproj_done")
    for T in range(2):
        for u in range(2):
            a.vm(f"buffer_store_dwordx4 {vr(BF+4*(2*T+u),4)}, v78, s[20:23], s28 offen offset:{T*64+u*32}")
    a.label("L_oproj_done")
    a.e("s_endpgm")
    return a.text()

def kd(name, vgpr, sgpr=102):
    return f""".amdhsa_kernel {name}
  .amdhsa_next_free_vgpr {vgpr}
  .amdhsa_next_free_sgpr {sgpr}
  .amdhsa_accum_offset {(vgpr+3)//4*4}
  .amdhsa_group_segment_fixed_size 0
  .amdhsa_kernarg_size 104
  .amdhsa_user_sgpr_count 2
  .amdhsa_user_sgpr_kernarg_segment_ptr 1
  .amdhsa_system_sgpr_workgroup_id_x 1
.end_amdhsa_kernel
"""

LDS2 = 16384 * int(OPT.get("ns2", 8))
hdr = f"""; fused MHA x2: kernel 1 = Q projection + attention per (block, batch, head); kernel 2 = output projection
; @launch kernel=attn_kernel grid=(512,1,1) block=(256,1,1) lds=81920
; @launch kernel=oproj_kernel grid=(256,1,1) block=(256,1,1) lds={LDS2}
.amdgcn_target "amdgcn-amd-amdhsa--gfx950"
.text
"""
body = hdr
for name, fn in (("attn_kernel", gen_attn), ("oproj_kernel", gen_oproj)):
    body += f".globl {name}\n.p2align 8\n.type {name},@function\n" + fn()
body += '.section .rodata,"a"\n.p2align 6\n' + kd("attn_kernel", 256) + ".p2align 6\n" + kd("oproj_kernel", 80 + 32 * int(OPT.get("nsb", 5)))
open(OUT, "w").write(body)
```

```python
import sys, math, struct

OUT = sys.argv[1] if len(sys.argv) > 1 else "out.s"
OPT = dict(x.split("=") for x in sys.argv[2:])

class Asm:
    def __init__(self):
        self.lines = []
        self.vm_seq = 0
        self.lg_seq = 0
    def e(self, s): self.lines.append("    " + s)
    def label(self, s): self.lines.append(s + ":")
    def c(self, s): self.lines.append("    ; " + s)
    def vm(self, s):
        self.e(s); self.vm_seq += 1
        return self.vm_seq
    def lg(self, s):
        self.e(s); self.lg_seq += 1
        return self.lg_seq
    def wait(self, vm=None, lg=None):
        parts = []
        if vm is not None:
            n = self.vm_seq - vm; assert n >= 0
            parts.append(f"vmcnt({min(n, 63)})")
        if lg is not None:
            n = self.lg_seq - lg; assert n >= 0
            parts.append(f"lgkmcnt({min(n, 15)})")
        self.e("s_waitcnt " + " ".join(parts))
    def text(self): return "\n".join(self.lines) + "\n"
    def stamp(self, idx, srd, vtmp, real=False):
        if not OPT.get("stamp"): return
        if OPT.get("stamp") == "2" and idx not in (0, 11, 12, 13): return
        self.e("s_memrealtime s[70:71]" if real else "s_memtime s[70:71]")
        self.e("s_waitcnt lgkmcnt(0)")
        self.e(f"v_mov_b32 v{vtmp}, s70")
        self.e(f"v_mov_b32 v{vtmp+1}, s72")
        self.vm(f"buffer_store_dword v{vtmp}, v{vtmp+1}, {srd}, 0 offen offset:{idx*4}")

def vr(b, n=1):
    return f"v{b}" if n == 1 else f"v[{b}:{b+n-1}]"

SCALE = 128 ** -0.5
CEXP = SCALE * math.log2(math.e)
def f32bits(x): return "0x%08x" % struct.unpack("<I", struct.pack("<f", x))[0]
NT = " nt"

WAITG = int(OPT.get("waitg", 2))
FST = {"": "", "nt": " nt", "sc1": " sc1", "sc01": " sc0 sc1"}[OPT.get("fst", "")]
class Item:
    def __init__(self, pre_read=None, reads=None, pre_mfma=None, mfma=None):
        self.pre_read = pre_read
        self.reads = reads
        self.pre_mfma = pre_mfma
        self.mfma = mfma

def run_pipeline(a, items, AF, NBUF, NRING, fillers=None, per=1):
    n = len(items)
    if fillers is None: fillers = []
    ids = {}
    def issue(j):
        it = items[j]
        if it.pre_read: it.pre_read()
        ids[j] = it.reads(AF + 4 * (j % NRING))
    for j in range(min(NBUF, n)):
        issue(j)
    for i in range(n):
        it = items[i]
        if it.pre_mfma: it.pre_mfma()
        if i % WAITG == 0:
            a.wait(lg=ids[min(i + WAITG - 1, n - 1)])
        it.mfma(AF + 4 * (i % NRING))
        for _ in range(per):
            if fillers: fillers.pop(0)()
        if i + NBUF < n:
            issue(i + NBUF)

def gen_attn():
    a = Asm()
    ACC = 0
    S = 64
    QF = 128
    PF = 160
    AF = 192
    NXS = int(OPT.get("nxs", 3))
    XS = 64
    XB = 112
    KVP = 144
    KA = 224
    VA = 232
    DK = 236
    DV = 240
    HI1K = 241; LANE16 = 242
    M = 243; L = 244
    T0 = 245
    DW = 224
    XO = 228
    LANE = 251
    WRA = 254
    XRA = 243
    XWA = 247
    TMP = 192
    NBUF = int(OPT.get("nbuf", 6)); NRING = 7
    NWS = 3
    XL = 49152
    NPRE = int(OPT.get("npre", 3))
    OST = {"": "", "nt": " nt", "sc1": " sc1", "sc01": " sc0 sc1"}[OPT.get("ost", "")]

    a.label("attn_kernel")
    a.e("s_cmp_ge_u32 s2, 512")
    a.e("s_cbranch_scc1 L_attn_done")
    a.e("s_load_dwordx8 s[44:51], s[0:1], 0")
    a.e("s_load_dwordx8 s[52:59], s[0:1], 40")
    a.e("s_load_dwordx2 s[60:61], s[0:1], 96")
    a.e("s_load_dwordx2 s[62:63], s[0:1], 32")
    a.e("s_load_dwordx2 s[68:69], s[0:1], 72")
    lane = LANE
    a.e(f"v_lshrrev_b32 v{TMP}, 6, v0")
    a.e(f"v_and_b32 v{lane}, 63, v0")
    a.e("s_nop 0")
    a.e(f"v_readfirstlane_b32 s24, v{TMP}")
    a.e("s_and_b32 s30, s2, 7")
    a.e("s_lshr_b32 s31, s2, 3")
    if OPT.get("mix") == "1":
        a.e("s_and_b32 s32, s31, 1")
        a.e("s_lshl_b32 s33, s30, 2")
        a.e("s_bfe_u32 s34, s31, 0x20001")
        a.e("s_add_u32 s33, s33, s34")
    elif OPT.get("mix") == "2":
        a.e("s_lshr_b32 s32, s31, 5")
        a.e("s_xor_b32 s32, s32, 1")
        a.e("s_lshl_b32 s33, s30, 2")
        a.e("s_and_b32 s34, s31, 3")
        a.e("s_add_u32 s33, s33, s34")
        a.e("s_lshl_b32 s31, s31, 1")
        a.e("s_and_b32 s31, s31, 63")
    elif OPT.get("mix") == "3":
        a.e("s_lshr_b32 s32, s31, 5")
        a.e("s_lshl_b32 s33, s30, 2")
        a.e("s_and_b32 s34, s31, 3")
        a.e("s_add_u32 s33, s33, s34")
        a.e("s_lshl_b32 s31, s31, 1")
        a.e("s_and_b32 s31, s31, 63")
    else:
        a.e("s_lshr_b32 s32, s30, 2")
        a.e("s_and_b32 s33, s30, 3")
        a.e("s_lshl_b32 s33, s33, 3")
        a.e("s_and_b32 s34, s31, 7")
        a.e("s_add_u32 s33, s33, s34")
    a.e("s_lshr_b32 s34, s31, 3")
    a.e("s_mul_i32 s25, s34, 229376")
    a.e("s_lshl_b32 s26, s33, 8")
    a.e("s_lshl_b32 s27, s34, 5")
    a.e("s_add_u32 s27, s27, s33")
    a.e("s_lshl_b32 s27, s27, 17")
    a.e("s_lshl_b32 s28, s32, 3")
    a.e("s_add_u32 s28, s28, s34")
    a.e("s_lshl_b32 s28, s28, 2")
    a.e("s_add_u32 s28, s28, s24")
    a.e("s_lshl_b32 s28, s28, 18")
    a.e("s_lshl_b32 s35, s33, 13")
    a.e("s_add_u32 s28, s28, s35")
    a.e("s_lshl_b32 s29, s24, 12")
    a.e("s_lshl_b32 s36, s24, 11")
    a.e(f"s_mov_b32 s42, {f32bits(CEXP)}")
    a.e("s_add_u32 s43, s33, s34")
    a.e("s_and_b32 s43, s43, 7")
    a.e("s_lshl_b32 s43, s43, 1" if OPT.get("rot") else "s_mov_b32 s43, 0")
    a.e("s_mov_b32 s38, -1"); a.e("s_mov_b32 s39, -1")
    a.e("s_cmp_eq_u32 s24, 3")
    a.e("s_cselect_b32 s38, 0, s38")
    a.e("s_cselect_b32 s39, 0, s39")
    a.e("s_waitcnt lgkmcnt(0)")
    a.e("s_cmp_eq_u32 s32, 0")
    for d, (sa, sb) in ((4, (44, 52)), (12, (46, 54)), (16, (48, 56)), (8, (50, 58)), (76, (62, 68))):
        a.e(f"s_cselect_b32 s{d}, s{sa}, s{sb}")
        a.e(f"s_cselect_b32 s{d+1}, s{sa+1}, s{sb+1}")
    a.e("s_mov_b32 s6, 1835008"); a.e("s_mov_b32 s7, 0x00020000")
    a.e("s_mov_b32 s10, 0x800000"); a.e("s_mov_b32 s11, 0x00020000")
    a.e("s_mov_b32 s14, 0x2000000"); a.e("s_mov_b32 s15, 0x00020000")
    a.e("s_mov_b32 s18, 0x2000000"); a.e("s_mov_b32 s19, 0x00020000")
    a.e("s_mov_b32 s20, s60"); a.e("s_mov_b32 s21, s61")
    a.e("s_mov_b32 s22, 0x1000000"); a.e("s_mov_b32 s23, 0x00020000")
    a.e("s_mov_b32 s78, 0x800000"); a.e("s_mov_b32 s79, 0x00020000")
    if OPT.get("stamp"):
        a.e("s_mov_b32 s64, s60"); a.e("s_mov_b32 s65, s61"); a.e("s_mov_b32 s66, 0x4000000"); a.e("s_mov_b32 s67, 0x00020000")
        a.e("s_lshl_b32 s72, s2, 2"); a.e("s_add_u32 s72, s72, s24"); a.e("s_lshl_b32 s72, s72, 8"); a.e("s_add_u32 s72, s72, 0x2000000")
        a.stamp(0, "s[64:67]", 222)
        a.stamp(12, "s[64:67]", 222, True)
    t0, t1, t2, t3, t4 = TMP, TMP+1, TMP+2, TMP+3, TMP+4
    a.e(f"v_lshrrev_b32 v{t0}, 4, v{lane}")
    a.e(f"v_and_b32 v{t1}, 15, v{lane}")
    a.e(f"v_xor_b32 v{t2}, v{t0}, v{t1}")
    a.e(f"v_lshlrev_b32 v{t3}, 8, v{t0}")
    a.e(f"v_add_u32 v{t3}, s29, v{t3}")
    for i in range(4):
        a.e(f"v_xor_b32 v{t4}, {4*i}, v{t2}")
        a.e(f"v_lshl_add_u32 v{DK+i}, v{t4}, 4, v{t3}")
    a.e(f"v_lshlrev_b32 v{t4}, 2, v{t0}")
    a.e(f"v_xor_b32 v{t4}, v{t4}, v{t1}")
    a.e(f"v_lshl_add_u32 v{DV}, v{t4}, 4, v{t3}")
    a.e("s_lshl_b32 s30, s24, 17")
    a.e(f"v_lshlrev_b32 v{t3}, 13, v{t0}")
    a.e(f"v_add_u32 v{t3}, s30, v{t3}")
    a.e(f"v_lshl_add_u32 v{t3}, v{t4}, 4, v{t3}")
    for i in range(4):
        a.e(f"v_add_u32 v{DW+i}, {i*(4*8192-1024)}, v{t3}")
    a.e(f"v_and_b32 v{t0}, 31, v{lane}")
    a.e(f"v_lshrrev_b32 v{t1}, 5, v{lane}")
    a.e(f"v_bfe_u32 v{t2}, v{t0}, 1, 3")
    a.e(f"v_xor_b32 v{t2}, v{t2}, v{t1}")
    a.e(f"v_lshlrev_b32 v{t2}, 4, v{t2}")
    a.e(f"v_lshl_add_u32 v{t2}, v{t0}, 7, v{t2}")
    a.e(f"s_add_u32 s30, s29, {XL}")
    a.e(f"v_add_u32 v{t2}, s30, v{t2}")
    for s_ in range(4):
        a.e(f"v_xor_b32 v{XRA+s_}, {s_<<5}, v{t2}")
    a.e(f"v_lshrrev_b32 v{t2}, 3, v{lane}")
    a.e(f"v_and_b32 v{t3}, 7, v{lane}")
    a.e("s_lshl_b32 s31, s24, 16")
    a.e(f"v_lshlrev_b32 v{t2}, 11, v{t2}")
    a.e(f"v_add_u32 v{t2}, s31, v{t2}")
    a.e(f"v_lshrrev_b32 v{t4}, 4, v{lane}")
    a.e(f"v_xor_b32 v{t3}, v{t3}, v{t4}")
    for i in range(4):
        a.e(f"v_xor_b32 v{t4}, {(4*i)&7}, v{t3}")
        a.e(f"v_lshl_add_u32 v{t4}, v{t4}, 4, v{t2}")
        a.e(f"v_add_u32 v{XO+i}, {i*(16384-1024)}, v{t4}")
    a.e(f"v_bfe_u32 v{t2}, v{lane}, 2, 2")
    a.e(f"v_bfe_u32 v{t3}, v{lane}, 4, 1")
    a.e(f"v_and_b32 v{t4}, 1, v{lane}")
    a.e(f"v_lshl_add_u32 v{t3}, v{t3}, 1, v{t4}")
    a.e(f"v_lshl_add_u32 v{t3}, v{t2}, 2, v{t3}")
    a.e(f"v_lshlrev_b32 v{t3}, 4, v{t3}")
    a.e(f"v_bfe_u32 v{t4}, v{lane}, 1, 1")
    a.e(f"v_lshl_add_u32 v{t3}, v{t4}, 3, v{t3}")
    a.e(f"v_lshl_add_u32 v{t3}, v{t2}, 8, v{t3}")
    a.e(f"v_lshl_add_u32 v{t3}, v{t1}, 11, v{t3}")
    for T in range(4):
        a.e(f"v_xor_b32 v{VA+T}, {T<<6}, v{t3}")
    a.e(f"v_lshlrev_b32 v{HI1K}, 10, v{t1}")
    a.e(f"v_lshlrev_b32 v{LANE16}, 4, v{lane}")
    a.e(f"v_add_u32 v{WRA}, s29, v{LANE16}")

    def make_ka():
        u0, u1, u2 = 252, 253, 255
        a.e(f"v_and_b32 v{u0}, 31, v{lane}")
        a.e(f"v_lshrrev_b32 v{u1}, 5, v{lane}")
        a.e(f"v_and_b32 v{u2}, 15, v{u0}")
        a.e(f"v_xor_b32 v{u2}, v{u2}, v{u1}")
        a.e(f"v_lshlrev_b32 v{u2}, 4, v{u2}")
        a.e(f"v_lshl_add_u32 v{u2}, v{u0}, 8, v{u2}")
        for s_ in range(8):
            a.e(f"v_xor_b32 v{KA+s_}, {s_<<5}, v{u2}")
    addr_of = {}; dma_id = {}; x_id = {}; state = {}
    fillers = []
    def now_or_later(fs, later):
        for f in fs:
            if later: fillers.append(f)
            else: f()
    def flush_until(cond):
        while not cond():
            fillers.pop(0)()
    NTQ = " nt" if OPT.get("ntq") else ""
    def issue_tile(tile, addr, later=False):
        kind, idx = tile
        addr_of[tile] = addr
        fs = []
        for p in range(2):
            def f(p=p):
                a.e(f"s_add_u32 m0, s29, {addr}")
                if kind == "W":
                    a.e(f"s_add_u32 s31, s26, {idx*64*8192}")
                else:
                    a.e(f"s_add_u32 s31, s27, {idx*16384}")
                for i in (2*p, 2*p+1):
                    if kind == "W":
                        r = a.vm(f"buffer_load_dwordx4 v{DW+i}, s[8:11], s31 offen offset:{i*1024}{NTQ} lds")
                    elif kind == "K":
                        r = a.vm(f"buffer_load_dwordx4 v{DK+i}, s[12:15], s31 offen offset:{i*1024}{NT} lds")
                    else:
                        r = a.vm(f"buffer_load_dwordx4 v{DV}, s[16:19], s31 offen offset:{i*1024}{NT} lds")
                if p == 1: dma_id[tile] = r
            fs.append(f)
        now_or_later(fs, later)
    pre_id = {}
    def issue_pre(tile, slot):
        kind, idx = tile
        a.e(f"s_add_u32 s31, s27, {idx*16384}")
        for i in range(4):
            d = vr(KVP + 16*slot + 4*i, 4)
            if kind == "K":
                pre_id[tile] = a.vm(f"buffer_load_dwordx4 {d}, v{DK+i}, s[12:15], s31 offen offset:{i*1024}{NT}")
            else:
                pre_id[tile] = a.vm(f"buffer_load_dwordx4 {d}, v{DV}, s[16:19], s31 offen offset:{i*1024}{NT}")
    def spill_pre(tile, slot, addr):
        addr_of[tile] = addr
        a.wait(vm=pre_id[tile])
        for i in range(4):
            state["prew", tile] = a.lg(f"ds_write_b128 v{WRA}, {vr(KVP + 16*slot + 4*i, 4)} offset:{addr + i*1024}")
    def issue_x(t, later=False):
        fs = []
        for p in range(2):
            def f(p=p):
                if p == 0 and ("xr", t - 2) in state:
                    a.wait(lg=state["xr", t - 2])
                a.e(f"s_add_u32 m0, s29, {XL + (t%2)*16384}")
                a.e(f"s_add_u32 s37, s25, {t*128}")
                if p == 1: a.e("s_mov_b64 exec, s[38:39]")
                for i in (2*p, 2*p+1):
                    r = a.vm(f"buffer_load_dwordx4 v{XO+i}, s[4:7], s37 offen offset:{i*1024}{NTQ} lds")
                if p == 1:
                    a.e("s_mov_b64 exec, -1")
                    x_id[t] = r
            fs.append(f)
        now_or_later(fs, later)

    cons = [("W", t) for t in range(16)]
    for g in range(4):
        cons += [("K", 2*g), ("K", 2*g+1), ("V", 2*g), ("V", 2*g+1)]
    kv_all = cons[16:]
    pre_tiles = kv_all[:NPRE]
    kvq = kv_all[NPRE:]
    if OPT.get("prio") in ("1", "2"): a.e("s_setprio 2")
    issue_x(0)
    issue_tile(("W", 0), 0)
    issue_x(1)
    issue_tile(("W", 1), 16384)
    issue_tile(("W", 2), 32768)
    PRE_AT = int(OPT.get("preat", -1))
    if PRE_AT < 0:
        for i, tl in enumerate(pre_tiles): issue_pre(tl, i)
    pre_left = list(enumerate(pre_tiles))
    def fill_region(addr, dma_only=False):
        if pre_left and not dma_only:
            i, tl = pre_left.pop(0)
            spill_pre(tl, i, addr)
        elif kvq:
            issue_tile(kvq.pop(0), addr, True)
    def sync(n):
        tile = cons[n]
        drain = (n <= 16)
        if tile in pre_tiles:
            if drain: a.e("s_waitcnt lgkmcnt(0)")
            else: a.wait(lg=state["prew", tile])
        else:
            flush_until(lambda: tile in dma_id)
            w = dma_id[tile]
            if tile[0] == "W":
                flush_until(lambda: n in x_id)
                w = max(w, x_id[n])
            a.wait(vm=w, lg=a.lg_seq if drain else None)
        a.e("s_barrier")
        if n == 0: a.stamp(1, "s[64:67]", 222)
        if n in (2, 4, 6, 8, 10, 12, 14): a.stamp(16 + n // 2, "s[64:67]", 222)
        if PRE_AT >= 0 and PRE_AT <= n < PRE_AT + 2 * NPRE and (n - PRE_AT) % 2 == 0:
            i = (n - PRE_AT) // 2
            fillers.append(lambda i=i: issue_pre(pre_tiles[i], i))
        if 1 <= n <= 13:
            issue_tile(("W", n + 2), addr_of[cons[n-1]], True)
        elif 14 <= n <= 16:
            fill_region(addr_of[cons[n-1]])
        elif n >= 18:
            fill_region(addr_of[cons[n-2]])
        if n == 15: fill_region(XL, True)
        if n == 16: fill_region(XL + 16384, True)

    cur_shift = {"K": 0, "V": 0}
    def adjust(kind, addr):
        regs = range(KA, KA+8) if kind == "K" else range(VA, VA+4)
        want = 65536 if addr >= 65536 else 0
        if cur_shift[kind] != want:
            d = want - cur_shift[kind]
            for r in regs:
                a.e(f"v_add_u32 v{r}, {d & 0xffffffff:#x}, v{r}")
            cur_shift[kind] = want
        return addr - want

    def softmax(g):
        a.stamp(3+2*g, "s[64:67]", 222)
        if OPT.get("prio") == "1": a.e("s_setprio 0")
        a.e("s_nop 7"); a.e("s_nop 5")
        for ch in range(4):
            b = S + 16*ch
            a.e(f"v_max3_f32 v{T0+ch}, v{b}, v{b+1}, v{b+2}")
        for k in range(6):
            for ch in range(4):
                b = S + 16*ch
                a.e(f"v_max3_f32 v{T0+ch}, v{T0+ch}, v{b+3+2*k}, v{b+4+2*k}")
        for ch in range(4):
            a.e(f"v_max_f32 v{T0+ch}, v{T0+ch}, v{S+16*ch+15}")
        a.e(f"v_max3_f32 v{T0}, v{T0}, v{T0+1}, v{T0+2}")
        a.e(f"v_max_f32 v{T0}, v{T0}, v{T0+3}")
        a.e(f"v_mov_b32 v{T0+1}, v{T0}")
        a.e("s_nop 1")
        a.e(f"v_permlane32_swap_b32 v{T0}, v{T0+1}")
        a.e("s_nop 1")
        if g == 0:
            a.e(f"v_max_f32 v{M}, v{T0}, v{T0+1}")
        else:
            a.e(f"v_max3_f32 v{T0}, v{T0}, v{T0+1}, v{M}")
            a.e(f"v_sub_f32 v{T0+1}, v{M}, v{T0}")
            a.e(f"v_mul_f32 v{T0+1}, s42, v{T0+1}")
            a.e(f"v_exp_f32 v{T0+1}, v{T0+1}")
            a.e(f"v_mov_b32 v{M}, v{T0}")
            a.e(f"v_mul_f32 v{L}, v{L}, v{T0+1}")
            for r in range(64):
                a.e(f"v_mul_f32 v{ACC+r}, v{ACC+r}, v{T0+1}")
                if r % 16 == 15 and fillers: fillers.pop(0)()
        a.e(f"v_mul_f32 v{T0}, s42, v{M}")
        for blk in range(8):
            b = S + 8*blk
            for r in range(8):
                a.e(f"v_fma_f32 v{b+r}, v{b+r}, s42, -v{T0}")
            for r in range(8):
                a.e(f"v_exp_f32 v{b+r}, v{b+r}")
            if fillers: fillers.pop(0)()
            if blk == 0:
                for r in range(4):
                    a.e(f"v_add_f32 v{T0+2+r}, v{b+r}, v{b+4+r}")
            else:
                for r in range(8):
                    a.e(f"v_add_f32 v{T0+2+(r&3)}, v{T0+2+(r&3)}, v{b+r}")
            for r in range(4):
                a.e(f"v_cvt_pk_bf16_f32 v{PF+4*blk+r}, v{b+2*r}, v{b+2*r+1}")
        a.e(f"v_add_f32 v{T0+2}, v{T0+2}, v{T0+3}")
        a.e(f"v_add_f32 v{T0+4}, v{T0+4}, v{T0+5}")
        a.e(f"v_add_f32 v{T0+2}, v{T0+2}, v{T0+4}")
        if g == 0:
            a.e(f"v_mov_b32 v{L}, v{T0+2}")
        else:
            a.e(f"v_add_f32 v{L}, v{L}, v{T0+2}")

    def qconv():
        a.stamp(2, "s[64:67]", 222)
        if OPT.get("prio") == "2": a.e("s_setprio 0")
        a.e("s_nop 7"); a.e("s_nop 5")
        for T in range(4):
            for u in range(2):
                for r in range(4):
                    a.e(f"v_cvt_pk_bf16_f32 v{QF+4*(2*T+u)+r}, v{ACC+16*T+8*u+2*r}, v{ACC+16*T+8*u+2*r+1}")
        a.e("s_nop 1")

    items = []
    for n, tile in enumerate(cons):
        kind, idx = tile
        if kind == "W":
            t = idx
            for s in range(4):
                for T in range(4):
                    first = (s == 0 and T == 0)
                    def pre_read(n=n, first=first, t=t):
                        if first:
                            sync(n)
                    def rd(buf, tile=tile, s=s, T=T, t=t):
                        sb = addr_of[tile]
                        if s == 0:
                            state["xr", t] = a.lg(f"ds_read_b128 {vr(XB+(t%2)*16+4*T,4)}, v{XRA+T} offset:{(t%2)*16384}")
                        if s == 2 and T == 0 and t + 2 < 16: issue_x(t + 2, True)
                        a.lg(f"ds_read_b64_tr_b16 {vr(buf,2)}, v{VA+T} offset:{sb + s*4096}")
                        return a.lg(f"ds_read_b64_tr_b16 {vr(buf+2,2)}, v{VA+T} offset:{sb + s*4096 + 1024}")
                    def mm(buf, idx=idx, s=s, T=T, t=t):
                        c = "0" if (idx == 0 and s == 0) else vr(ACC+16*T, 16)
                        a.e(f"v_mfma_f32_32x32x16_bf16 {vr(ACC+16*T,16)}, {vr(buf,4)}, {vr(XB+(t%2)*16+4*s,4)}, {c}")
                    items.append(Item(pre_read, rd, None, mm))
        elif kind == "K":
            jj = idx & 1
            for s in range(8):
                for ks in range(2):
                    first = (s == 0 and ks == 0)
                    def pre_read(n=n, first=first, tile=tile):
                        if first:
                            sync(n)
                            if tile == ("K", 0):
                                flush_until(lambda: not fillers)
                                make_ka()
                            state[tile] = adjust("K", addr_of[tile])
                    def rd(buf, tile=tile, s=s, ks=ks):
                        return a.lg(f"ds_read_b128 {vr(buf,4)}, v{KA+s} offset:{state[tile] + ks*8192}")
                    def pm(idx=idx, first=first):
                        if idx == 0 and first:
                            qconv()
                    def mm(buf, s=s, ks=ks, jj=jj):
                        d = S + 16*(2*jj+ks)
                        c = "0" if s == 0 else vr(d, 16)
                        a.e(f"v_mfma_f32_32x32x16_bf16 {vr(d,16)}, {vr(buf,4)}, {vr(QF+4*s,4)}, {c}")
                    items.append(Item(pre_read, rd, pm, mm))
        else:
            vv = idx & 1
            for u in range(4):
                for T in range(4):
                    first = (u == 0 and T == 0)
                    def pre_read(n=n, first=first, tile=tile, idx=idx):
                        if first:
                            sync(n)
                            if idx == 0:
                                for T_ in range(4):
                                    a.e(f"v_sub_u32 v{VA+T_}, v{VA+T_}, v{HI1K}")
                            state[tile] = adjust("V", addr_of[tile])
                    def rd(buf, tile=tile, u=u, T=T):
                        sb = state[tile]
                        a.lg(f"ds_read_b64_tr_b16 {vr(buf,2)}, v{VA+T} offset:{sb + u*4096}")
                        return a.lg(f"ds_read_b64_tr_b16 {vr(buf+2,2)}, v{VA+T} offset:{sb + u*4096 + 2048}")
                    def pm(idx=idx, first=first):
                        if first and idx % 2 == 0:
                            softmax(idx // 2)
                            if OPT.get("prio") == "1": a.e("s_setprio 2")
                            a.stamp(4+idx, "s[64:67]", 222)
                            a.e("s_nop 1")
                    def mm(buf, idx=idx, u=u, T=T, vv=vv):
                        c = "0" if (idx == 0 and u == 0) else vr(ACC+16*T, 16)
                        a.e(f"v_mfma_f32_32x32x16_bf16 {vr(ACC+16*T,16)}, {vr(buf,4)}, {vr(PF+4*(4*vv+u),4)}, {c}")
                    items.append(Item(pre_read, rd, pm, mm))
    run_pipeline(a, items, AF, NBUF, NRING, fillers)
    assert not fillers

    a.c("---- epilogue")
    a.stamp(11, "s[64:67]", 222)
    a.stamp(13, "s[64:67]", 222, True)
    a.e(f"v_mov_b32 v{T0+1}, v{L}")
    a.e("s_nop 1")
    a.e(f"v_permlane32_swap_b32 v{L}, v{T0+1}")
    a.e("s_nop 1")
    a.e(f"v_add_f32 v{L}, v{L}, v{T0+1}")
    a.e(f"v_rcp_f32 v{L}, v{L}")
    a.e("s_nop 7"); a.e("s_nop 3")
    for r in range(64):
        a.e(f"v_mul_f32 v{ACC+r}, v{ACC+r}, v{L}")
    for T in range(4):
        for u in range(2):
            for r in range(4):
                a.e(f"v_cvt_pk_bf16_f32 v{S+4*(2*T+u)+r}, v{ACC+16*T+8*u+2*r}, v{ACC+16*T+8*u+2*r+1}")
    if OPT.get("omask"):
        a.e("s_mov_b32 s82, -1"); a.e("s_mov_b32 s83, -1")
        a.e("s_cmp_eq_u32 s24, 3")
        a.e("s_cselect_b32 s82, 0xffff, s82")
        a.e("s_cselect_b32 s83, 0xffff, s83")
        a.e("s_mov_b64 exec, s[82:83]")
    for T in range(4):
        for u in range(2):
            ks = 2*T + u
            if ks % 4 == 0 and ks > 0:
                a.e("s_add_u32 s28, s28, 4096")
            a.vm(f"buffer_store_dwordx4 {vr(S+4*ks,4)}, v{LANE16}, s[20:23], s28 offen offset:{(ks%4)*1024}{OST}")
    if OPT.get("omask"): a.e("s_mov_b64 exec, -1")
    if OPT.get("wend", "1") == "1":
        a.e("s_lshl_b32 s31, s33, 3")
        a.e("s_add_u32 s31, s31, s34")
        a.e("s_lshl_b32 s31, s31, 2")
        a.e("s_add_u32 s31, s31, s24")
        a.e(f"v_lshlrev_b32 v{T0}, 3, v{LANE16}")
        a.e("s_lshl_b32 s31, s31, 13")
        a.vm(f"buffer_load_dword v{T0+1}, v{T0}, s[76:79], s31 offen")
    a.label("L_attn_done")
    a.e("s_endpgm")
    return a.text()

def gen_oproj():
    a = Asm()
    NSB = int(OPT.get("nsb", 5))
    NS = int(OPT.get("ns2", 8)); SLOT = 16384
    ACC = 0
    AF = 32
    VA = 64
    DW = 68
    XO = 72
    BF = 80
    NBUF = int(OPT.get("nbuf2", 6)); NRING = 8
    a.label("oproj_kernel")
    a.e("s_cmp_ge_u32 s2, 256")
    a.e("s_cbranch_scc1 L_oproj_done")
    a.e("s_load_dwordx2 s[44:45], s[0:1], 32")
    a.e("s_load_dwordx2 s[46:47], s[0:1], 72")
    a.e("s_load_dwordx2 s[48:49], s[0:1], 80")
    a.e("s_load_dwordx2 s[50:51], s[0:1], 96")
    a.e("v_lshrrev_b32 v73, 6, v0")
    a.e("v_and_b32 v74, 63, v0")
    a.e("s_nop 0")
    a.e("v_readfirstlane_b32 s24, v73")
    a.e("s_and_b32 s30, s2, 7")
    a.e("s_lshr_b32 s31, s2, 3")
    a.e("s_lshr_b32 s32, s30, 2")
    a.e("s_bfe_u32 s33, s30, 0x10001")
    a.e("s_lshl_b32 s33, s33, 2")
    a.e("s_lshr_b32 s34, s31, 3")
    a.e("s_add_u32 s33, s33, s34")
    a.e("s_and_b32 s34, s30, 1")
    a.e("s_lshl_b32 s34, s34, 3")
    a.e("s_and_b32 s35, s31, 7")
    a.e("s_add_u32 s34, s34, s35")
    if OPT.get("map2"):
        a.e("s_lshr_b32 s33, s31, 2")
        a.e("s_and_b32 s34, s30, 3")
        a.e("s_lshl_b32 s34, s34, 2")
        a.e("s_and_b32 s35, s31, 3")
        a.e("s_add_u32 s34, s34, s35")
    a.e("s_lshl_b32 s25, s32, 3")
    a.e("s_add_u32 s25, s25, s33")
    a.e("s_lshl_b32 s25, s25, 2")
    a.e("s_add_u32 s25, s25, s24")
    a.e("s_lshl_b32 s25, s25, 18")
    a.e("s_lshl_b32 s26, s34, 7")
    a.e("s_mul_i32 s28, s33, 458752")
    a.e("s_lshl_b32 s35, s32, 11")
    a.e("s_add_u32 s28, s28, s35")
    a.e("s_add_u32 s28, s28, s26")
    a.e("s_lshl_b32 s29, s24, 12")
    a.e("s_add_u32 s54, s33, s34")
    a.e("s_and_b32 s54, s54, 7")
    a.e("s_lshl_b32 s54, s54, 2" if OPT.get("rot2") else "s_mov_b32 s54, 0")
    a.e("s_mov_b32 s38, -1"); a.e("s_mov_b32 s39, -1")
    a.e("s_cmp_eq_u32 s24, 3")
    a.e("s_cselect_b32 s38, 0xffff, s38")
    a.e("s_cselect_b32 s39, 0xffff, s39")
    a.e("s_waitcnt lgkmcnt(0)")
    a.e("s_cmp_eq_u32 s32, 0")
    a.e("s_cselect_b32 s8, s44, s46")
    a.e("s_cselect_b32 s9, s45, s47")
    a.e("s_mov_b32 s10, 0x800000"); a.e("s_mov_b32 s11, 0x00020000")
    a.e("s_mov_b32 s4, s50"); a.e("s_mov_b32 s5, s51")
    a.e("s_mov_b32 s6, 0x1000000"); a.e("s_mov_b32 s7, 0x00020000")
    a.e("s_mov_b32 s20, s48"); a.e("s_mov_b32 s21, s49")
    a.e("s_mov_b32 s22, 3670016"); a.e("s_mov_b32 s23, 0x00020000")
    lane = 74
    if OPT.get("stamp"):
        a.e("s_mov_b32 s64, s50"); a.e("s_mov_b32 s65, s51"); a.e("s_mov_b32 s66, 0x4000000"); a.e("s_mov_b32 s67, 0x00020000")
        a.e("s_lshl_b32 s72, s2, 2"); a.e("s_add_u32 s72, s72, s24"); a.e("s_lshl_b32 s72, s72, 8"); a.e("s_add_u32 s72, s72, 0x2100000")
        a.stamp(0, "s[64:67]", 75)
        a.stamp(12, "s[64:67]", 75, True)
    a.e(f"v_lshrrev_b32 v75, 3, v{lane}")
    a.e(f"v_and_b32 v76, 7, v{lane}")
    a.e(f"v_bfe_u32 v77, v{lane}, 4, 1")
    a.e("v_lshlrev_b32 v77, 2, v77")
    a.e("v_xor_b32 v76, v76, v77")
    a.e("s_lshl_b32 s30, s24, 16")
    a.e("v_lshlrev_b32 v75, 11, v75")
    a.e("v_add_u32 v75, s30, v75")
    a.e("v_lshl_add_u32 v75, v76, 4, v75")
    for i in range(4):
        a.e(f"v_add_u32 v{DW+i}, {i*(8*2048-1024)}, v75")
    a.e(f"v_lshrrev_b32 v75, 5, v{lane}")
    a.e(f"v_bfe_u32 v76, v{lane}, 2, 2")
    a.e(f"v_bfe_u32 v77, v{lane}, 4, 1")
    a.e(f"v_and_b32 v78, 1, v{lane}")
    a.e("v_lshl_add_u32 v77, v77, 1, v78")
    a.e(f"v_bfe_u32 v78, v{lane}, 3, 1")
    a.e("v_lshl_add_u32 v77, v78, 2, v77")
    a.e("v_lshlrev_b32 v77, 4, v77")
    a.e(f"v_bfe_u32 v78, v{lane}, 1, 1")
    a.e("v_lshl_add_u32 v77, v78, 3, v77")
    a.e("v_lshl_add_u32 v77, v76, 7, v77")
    a.e("v_lshl_add_u32 v77, v75, 10, v77")
    for T in range(2):
        a.e(f"v_xor_b32 v{VA+T}, {T<<6}, v77")
        a.e(f"v_add_u32 v{VA+2+T}, 0x10000, v{VA+T}")
    a.e(f"v_lshlrev_b32 v{XO}, 4, v{lane}")
    a.e(f"v_and_b32 v76, 31, v{lane}")
    a.e("s_lshl_b32 s30, s24, 5")
    a.e("v_add_u32 v76, s30, v76")
    a.e("v_lshlrev_b32 v75, 4, v75")
    a.e("v_lshl_add_u32 v78, v76, 12, v75")
    a.e("v_cmp_gt_u32 vcc, 112, v76")
    a.e("s_nop 1")
    a.e("s_mov_b64 s[40:41], vcc")
    NT_ = 32
    dma_id = {}; b_id = {}
    def issue_tile(t):
        slot = t % NS
        a.e(f"s_add_u32 s30, s29, {slot*SLOT}")
        a.e("s_mov_b32 m0, s30")
        a.e(f"s_add_u32 s31, s54, {t}"); a.e("s_and_b32 s31, s31, 31"); a.e("s_lshl_b32 s31, s31, 18"); a.e("s_add_u32 s31, s31, s26")
        for i in range(4):
            dma_id[t] = a.vm(f"buffer_load_dwordx4 v{DW+i}, s[8:11], s31 offen offset:{i*1024}{' nt' if OPT.get('ntw') else ''} lds")
    def issue_b(t):
        base = BF + (t % NSB) * 32
        a.e("s_mov_b64 exec, s[38:39]")
        for hf in range(2):
            a.e(f"s_add_u32 s31, s54, {t}"); a.e("s_and_b32 s31, s31, 31"); a.e("s_lshl_b32 s31, s31, 13"); a.e("s_add_u32 s31, s31, s25"); a.e(f"s_add_u32 s31, s31, {hf*4096}")
            for s in range(4):
                b_id[t] = a.vm(f"buffer_load_dwordx4 {vr(base+4*(4*hf+s),4)}, v{XO}, s[4:7], s31 offen offset:{s*1024}{' nt' if OPT.get('nto') else ''}")
        a.e("s_mov_b64 exec, -1")
    fillers = []
    TOUCH = OPT.get("touch")
    def touch(part):
        a.e("s_lshr_b32 s52, s2, 3")
        a.e("s_lshl_b32 s52, s52, 2")
        a.e("s_add_u32 s52, s52, s24")
        a.e("s_lshl_b32 s52, s52, 15")
        a.e("s_and_b32 s53, s2, 3")
        a.e("s_lshl_b32 s53, s53, 9")
        a.e("s_add_u32 s52, s52, s53")
        a.e(f"s_add_u32 s52, s52, {part*2048*2048}")
        a.e(f"v_lshrrev_b32 v75, 2, v{lane}")
        a.e(f"v_and_b32 v76, 3, v{lane}")
        a.e("v_lshlrev_b32 v76, 7, v76")
        a.e("v_lshl_add_u32 v75, v75, 11, v76")
        a.vm(f"buffer_load_dword v79, v75, s[8:11], s52 offen{' nt' if TOUCH == 'nt' else ''}")
    if TOUCH: touch(0)
    def queue_tile(t):
        slot = t % NS
        def mk(i):
            def f():
                if i == 0:
                    a.e(f"s_add_u32 s30, s29, {slot*SLOT}")
                    a.e("s_mov_b32 m0, s30")
                    a.e(f"s_add_u32 s36, s54, {t}"); a.e("s_and_b32 s36, s36, 31"); a.e("s_lshl_b32 s36, s36, 18"); a.e("s_add_u32 s36, s36, s26")
                dma_id[t] = a.vm(f"buffer_load_dwordx4 v{DW+i}, s[8:11], s36 offen offset:{i*1024}{' nt' if OPT.get('ntw') else ''} lds")
            return f
        for i in range(4): fillers.append(mk(i))
    def queue_b(t):
        base = BF + (t % NSB) * 32
        def mk(j):
            def f():
                hf, s_ = j // 4, j % 4
                if s_ == 0:
                    a.e(f"s_add_u32 s37, s54, {t}"); a.e("s_and_b32 s37, s37, 31"); a.e("s_lshl_b32 s37, s37, 13"); a.e("s_add_u32 s37, s37, s25"); a.e(f"s_add_u32 s37, s37, {hf*4096}")
                a.e("s_mov_b64 exec, s[38:39]")
                b_id[t] = a.vm(f"buffer_load_dwordx4 {vr(base+4*j,4)}, v{XO}, s[4:7], s37 offen offset:{s_*1024}{' nt' if OPT.get('nto') else ''}")
                a.e("s_mov_b64 exec, -1")
            return f
        for j in range(8): fillers.append(mk(j))
    for t in range(max(NS, NSB - 1)):
        if t < NS: issue_tile(t)
        if t < NSB - 1: issue_b(t)
    items = []
    for t in range(NT_):
        for s in range(8):
            for T in range(2):
                first = (s == 0 and T == 0)
                def pre_read(t=t, first=first):
                    if first:
                        a.c(f"---- step {t}")
                        a.wait(vm=dma_id[t])
                        a.e("s_barrier")
                        if t % 4 == 0: a.stamp(16 + t // 4, "s[64:67]", 75)
                        if TOUCH and t == 4: touch(1)
                        if t >= 2 and t + NS - 2 < NT_: queue_tile(t + NS - 2)
                def rd(buf, t=t, s=s, T=T):
                    sb = (t % NS) * SLOT
                    va = VA + T
                    if sb >= 65536: va += 2; sb -= 65536
                    assert sb < 65536
                    a.lg(f"ds_read_b64_tr_b16 {vr(buf,2)}, v{va} offset:{sb + s*2048}")
                    return a.lg(f"ds_read_b64_tr_b16 {vr(buf+2,2)}, v{va} offset:{sb + s*2048 + 512}")
                def pm(t=t, first=first):
                    if first:
                        a.wait(vm=b_id[t])
                        if t + NSB - 1 < NT_: queue_b(t + NSB - 1)
                def mm(buf, t=t, s=s, T=T):
                    bb = BF + (t % NSB) * 32
                    c = "0" if (t == 0 and s == 0) else vr(ACC+16*T, 16)
                    a.e(f"v_mfma_f32_32x32x16_bf16 {vr(ACC+16*T,16)}, {vr(buf,4)}, {vr(bb+4*s,4)}, {c}")
                items.append(Item(pre_read, rd, pm, mm))
    run_pipeline(a, items, AF, NBUF, NRING, fillers)
    a.stamp(11, "s[64:67]", 75)
    a.stamp(13, "s[64:67]", 75, True)
    a.e("s_nop 7"); a.e("s_nop 5")
    for T in range(2):
        for u in range(2):
            for r in range(4):
                a.e(f"v_cvt_pk_bf16_f32 v{BF+4*(2*T+u)+r}, v{ACC+16*T+8*u+2*r}, v{ACC+16*T+8*u+2*r+1}")
    a.e("s_and_saveexec_b64 s[42:43], s[40:41]")
    a.e("s_cbranch_execz L_oproj_done")
    for T in range(2):
        for u in range(2):
            a.vm(f"buffer_store_dwordx4 {vr(BF+4*(2*T+u),4)}, v78, s[20:23], s28 offen offset:{T*64+u*32}{FST}")
    a.label("L_oproj_done")
    a.e("s_endpgm")
    return a.text()

def kd(name, vgpr, sgpr=102):
    return f""".amdhsa_kernel {name}
  .amdhsa_next_free_vgpr {vgpr}
  .amdhsa_next_free_sgpr {sgpr}
  .amdhsa_accum_offset {(vgpr+3)//4*4}
  .amdhsa_group_segment_fixed_size 0
  .amdhsa_kernarg_size 104
  .amdhsa_user_sgpr_count 2
  .amdhsa_user_sgpr_kernarg_segment_ptr 1
  .amdhsa_system_sgpr_workgroup_id_x 1
.end_amdhsa_kernel
"""

LDS2 = 16384 * int(OPT.get("ns2", 8))
hdr = f"""; fused MHA x2: kernel 1 = Q projection + attention per (block, batch, head); kernel 2 = output projection
; @launch kernel=attn_kernel grid=(512,1,1) block=(256,1,1) lds=81920
; @launch kernel=oproj_kernel grid=(256,1,1) block=(256,1,1) lds={LDS2}
.amdgcn_target "amdgcn-amd-amdhsa--gfx950"
.text
"""
body = hdr
for name, fn in (("attn_kernel", gen_attn), ("oproj_kernel", gen_oproj)):
    body += f".globl {name}\n.p2align 8\n.type {name},@function\n" + fn()
body += '.section .rodata,"a"\n.p2align 6\n' + kd("attn_kernel", 256) + ".p2align 6\n" + kd("oproj_kernel", 80 + 32 * int(OPT.get("nsb", 5)))
open(OUT, "w").write(body)
```

```python
import sys, math, struct

OUT = sys.argv[1] if len(sys.argv) > 1 else "out.s"
OPT = dict(x.split("=") for x in sys.argv[2:])

class Asm:
    def __init__(self):
        self.lines = []
        self.vm_seq = 0
        self.lg_seq = 0
    def e(self, s): self.lines.append("    " + s)
    def label(self, s): self.lines.append(s + ":")
    def c(self, s): self.lines.append("    ; " + s)
    def vm(self, s):
        self.e(s); self.vm_seq += 1
        return self.vm_seq
    def lg(self, s):
        self.e(s); self.lg_seq += 1
        return self.lg_seq
    def wait(self, vm=None, lg=None):
        parts = []
        if vm is not None:
            n = self.vm_seq - vm; assert n >= 0
            parts.append(f"vmcnt({min(n, 63)})")
        if lg is not None:
            n = self.lg_seq - lg; assert n >= 0
            parts.append(f"lgkmcnt({min(n, 15)})")
        self.e("s_waitcnt " + " ".join(parts))
    def text(self): return "\n".join(self.lines) + "\n"
    def stamp(self, idx, srd, vtmp, real=False):
        if not OPT.get("stamp"): return
        if OPT.get("stamp") == "2" and idx not in (0, 11, 12, 13): return
        self.e("s_memrealtime s[70:71]" if real else "s_memtime s[70:71]")
        self.e("s_waitcnt lgkmcnt(0)")
        self.e(f"v_mov_b32 v{vtmp}, s70")
        self.e(f"v_mov_b32 v{vtmp+1}, s72")
        self.vm(f"buffer_store_dword v{vtmp}, v{vtmp+1}, {srd}, 0 offen offset:{idx*4}")

def vr(b, n=1):
    return f"v{b}" if n == 1 else f"v[{b}:{b+n-1}]"

SCALE = 128 ** -0.5
CEXP = SCALE * math.log2(math.e)
def f32bits(x): return "0x%08x" % struct.unpack("<I", struct.pack("<f", x))[0]
NT = " nt"

WAITG = int(OPT.get("waitg", 2))
FST = {"": "", "nt": " nt", "sc1": " sc1", "sc01": " sc0 sc1"}[OPT.get("fst", "")]
class Item:
    def __init__(self, pre_read=None, reads=None, pre_mfma=None, mfma=None):
        self.pre_read = pre_read
        self.reads = reads
        self.pre_mfma = pre_mfma
        self.mfma = mfma

def run_pipeline(a, items, AF, NBUF, NRING, fillers=None, per=1):
    n = len(items)
    if fillers is None: fillers = []
    ids = {}
    def issue(j):
        it = items[j]
        if it.pre_read: it.pre_read()
        ids[j] = it.reads(AF + 4 * (j % NRING))
    for j in range(min(NBUF, n)):
        issue(j)
    for i in range(n):
        it = items[i]
        if it.pre_mfma: it.pre_mfma()
        if i % WAITG == 0:
            a.wait(lg=ids[min(i + WAITG - 1, n - 1)])
        it.mfma(AF + 4 * (i % NRING))
        for _ in range(per):
            if fillers: fillers.pop(0)()
        if i + NBUF < n:
            issue(i + NBUF)

def gen_attn():
    a = Asm()
    ACC = 0
    S = 64
    QF = 128
    PF = 160
    AF = 192
    NXS = int(OPT.get("nxs", 3))
    XS = 64
    XB = 112
    KVP = 144
    KA = 224
    VA = 232
    DK = 236
    DV = 240
    HI1K = 241; LANE16 = 242
    M = 243; L = 244
    T0 = 245
    DW = 224
    XO = 228
    LANE = 251
    WRA = 254
    XRA = 243
    XWA = 247
    TMP = 192
    NBUF = int(OPT.get("nbuf", 6)); NRING = 7
    NWS = 3
    XL = 49152
    NPRE = int(OPT.get("npre", 3))
    OST = {"": "", "nt": " nt", "sc1": " sc1", "sc01": " sc0 sc1"}[OPT.get("ost", "")]

    a.label("attn_kernel")
    a.e("s_cmp_ge_u32 s2, 512")
    a.e("s_cbranch_scc1 L_attn_done")
    a.e("s_load_dwordx8 s[44:51], s[0:1], 0")
    a.e("s_load_dwordx8 s[52:59], s[0:1], 40")
    a.e("s_load_dwordx2 s[60:61], s[0:1], 96")
    a.e("s_load_dwordx2 s[62:63], s[0:1], 32")
    a.e("s_load_dwordx2 s[68:69], s[0:1], 72")
    lane = LANE
    a.e(f"v_lshrrev_b32 v{TMP}, 6, v0")
    a.e(f"v_and_b32 v{lane}, 63, v0")
    a.e("s_nop 0")
    a.e(f"v_readfirstlane_b32 s24, v{TMP}")
    a.e("s_and_b32 s30, s2, 7")
    a.e("s_lshr_b32 s31, s2, 3")
    if OPT.get("mix") == "1":
        a.e("s_and_b32 s32, s31, 1")
        a.e("s_lshl_b32 s33, s30, 2")
        a.e("s_bfe_u32 s34, s31, 0x20001")
        a.e("s_add_u32 s33, s33, s34")
    elif OPT.get("mix") == "2":
        a.e("s_lshr_b32 s32, s31, 5")
        a.e("s_xor_b32 s32, s32, 1")
        a.e("s_lshl_b32 s33, s30, 2")
        a.e("s_and_b32 s34, s31, 3")
        a.e("s_add_u32 s33, s33, s34")
        a.e("s_lshl_b32 s31, s31, 1")
        a.e("s_and_b32 s31, s31, 63")
    elif OPT.get("mix") == "3":
        a.e("s_lshr_b32 s32, s31, 5")
        a.e("s_lshl_b32 s33, s30, 2")
        a.e("s_and_b32 s34, s31, 3")
        a.e("s_add_u32 s33, s33, s34")
        a.e("s_lshl_b32 s31, s31, 1")
        a.e("s_and_b32 s31, s31, 63")
    else:
        a.e("s_lshr_b32 s32, s30, 2")
        a.e("s_and_b32 s33, s30, 3")
        a.e("s_lshl_b32 s33, s33, 3")
        a.e("s_and_b32 s34, s31, 7")
        a.e("s_add_u32 s33, s33, s34")
    a.e("s_lshr_b32 s34, s31, 3")
    a.e("s_mul_i32 s25, s34, 229376")
    a.e("s_lshl_b32 s26, s33, 8")
    a.e("s_lshl_b32 s27, s34, 5")
    a.e("s_add_u32 s27, s27, s33")
    a.e("s_lshl_b32 s27, s27, 17")
    a.e("s_lshl_b32 s28, s32, 3")
    a.e("s_add_u32 s28, s28, s34")
    a.e("s_lshl_b32 s28, s28, 2")
    a.e("s_add_u32 s28, s28, s24")
    a.e("s_lshl_b32 s28, s28, 18")
    a.e("s_lshl_b32 s35, s33, 13")
    a.e("s_add_u32 s28, s28, s35")
    a.e("s_lshl_b32 s29, s24, 12")
    a.e("s_lshl_b32 s36, s24, 11")
    a.e(f"s_mov_b32 s42, {f32bits(CEXP)}")
    a.e("s_add_u32 s43, s33, s34")
    a.e("s_and_b32 s43, s43, 7")
    a.e("s_lshl_b32 s43, s43, 1" if OPT.get("rot") else "s_mov_b32 s43, 0")
    a.e("s_mov_b32 s38, -1"); a.e("s_mov_b32 s39, -1")
    a.e("s_cmp_eq_u32 s24, 3")
    a.e("s_cselect_b32 s38, 0, s38")
    a.e("s_cselect_b32 s39, 0, s39")
    a.e("s_waitcnt lgkmcnt(0)")
    a.e("s_cmp_eq_u32 s32, 0")
    for d, (sa, sb) in ((4, (44, 52)), (12, (46, 54)), (16, (48, 56)), (8, (50, 58)), (76, (62, 68))):
        a.e(f"s_cselect_b32 s{d}, s{sa}, s{sb}")
        a.e(f"s_cselect_b32 s{d+1}, s{sa+1}, s{sb+1}")
    a.e("s_mov_b32 s6, 1835008"); a.e("s_mov_b32 s7, 0x00020000")
    a.e("s_mov_b32 s10, 0x800000"); a.e("s_mov_b32 s11, 0x00020000")
    a.e("s_mov_b32 s14, 0x2000000"); a.e("s_mov_b32 s15, 0x00020000")
    a.e("s_mov_b32 s18, 0x2000000"); a.e("s_mov_b32 s19, 0x00020000")
    a.e("s_mov_b32 s20, s60"); a.e("s_mov_b32 s21, s61")
    a.e("s_mov_b32 s22, 0x1000000"); a.e("s_mov_b32 s23, 0x00020000")
    a.e("s_mov_b32 s78, 0x800000"); a.e("s_mov_b32 s79, 0x00020000")
    if OPT.get("stamp"):
        a.e("s_mov_b32 s64, s60"); a.e("s_mov_b32 s65, s61"); a.e("s_mov_b32 s66, 0x4000000"); a.e("s_mov_b32 s67, 0x00020000")
        a.e("s_lshl_b32 s72, s2, 2"); a.e("s_add_u32 s72, s72, s24"); a.e("s_lshl_b32 s72, s72, 8"); a.e("s_add_u32 s72, s72, 0x2000000")
        a.stamp(0, "s[64:67]", 222)
        a.stamp(12, "s[64:67]", 222, True)
    t0, t1, t2, t3, t4 = TMP, TMP+1, TMP+2, TMP+3, TMP+4
    a.e(f"v_lshrrev_b32 v{t0}, 4, v{lane}")
    a.e(f"v_and_b32 v{t1}, 15, v{lane}")
    a.e(f"v_xor_b32 v{t2}, v{t0}, v{t1}")
    a.e(f"v_lshlrev_b32 v{t3}, 8, v{t0}")
    a.e(f"v_add_u32 v{t3}, s29, v{t3}")
    for i in range(4):
        a.e(f"v_xor_b32 v{t4}, {4*i}, v{t2}")
        a.e(f"v_lshl_add_u32 v{DK+i}, v{t4}, 4, v{t3}")
    a.e(f"v_lshlrev_b32 v{t4}, 2, v{t0}")
    a.e(f"v_xor_b32 v{t4}, v{t4}, v{t1}")
    a.e(f"v_lshl_add_u32 v{DV}, v{t4}, 4, v{t3}")
    a.e("s_lshl_b32 s30, s24, 17")
    a.e(f"v_lshlrev_b32 v{t3}, 13, v{t0}")
    a.e(f"v_add_u32 v{t3}, s30, v{t3}")
    a.e(f"v_lshl_add_u32 v{t3}, v{t4}, 4, v{t3}")
    for i in range(4):
        a.e(f"v_add_u32 v{DW+i}, {i*(4*8192-1024)}, v{t3}")
    a.e(f"v_and_b32 v{t0}, 31, v{lane}")
    a.e(f"v_lshrrev_b32 v{t1}, 5, v{lane}")
    a.e(f"v_bfe_u32 v{t2}, v{t0}, 1, 3")
    a.e(f"v_xor_b32 v{t2}, v{t2}, v{t1}")
    a.e(f"v_lshlrev_b32 v{t2}, 4, v{t2}")
    a.e(f"v_lshl_add_u32 v{t2}, v{t0}, 7, v{t2}")
    a.e(f"s_add_u32 s30, s29, {XL}")
    a.e(f"v_add_u32 v{t2}, s30, v{t2}")
    for s_ in range(4):
        a.e(f"v_xor_b32 v{XRA+s_}, {s_<<5}, v{t2}")
    a.e(f"v_lshrrev_b32 v{t2}, 3, v{lane}")
    a.e(f"v_and_b32 v{t3}, 7, v{lane}")
    a.e("s_lshl_b32 s31, s24, 16")
    a.e(f"v_lshlrev_b32 v{t2}, 11, v{t2}")
    a.e(f"v_add_u32 v{t2}, s31, v{t2}")
    a.e(f"v_lshrrev_b32 v{t4}, 4, v{lane}")
    a.e(f"v_xor_b32 v{t3}, v{t3}, v{t4}")
    for i in range(4):
        a.e(f"v_xor_b32 v{t4}, {(4*i)&7}, v{t3}")
        a.e(f"v_lshl_add_u32 v{t4}, v{t4}, 4, v{t2}")
        a.e(f"v_add_u32 v{XO+i}, {i*(16384-1024)}, v{t4}")
    a.e(f"v_bfe_u32 v{t2}, v{lane}, 2, 2")
    a.e(f"v_bfe_u32 v{t3}, v{lane}, 4, 1")
    a.e(f"v_and_b32 v{t4}, 1, v{lane}")
    a.e(f"v_lshl_add_u32 v{t3}, v{t3}, 1, v{t4}")
    a.e(f"v_lshl_add_u32 v{t3}, v{t2}, 2, v{t3}")
    a.e(f"v_lshlrev_b32 v{t3}, 4, v{t3}")
    a.e(f"v_bfe_u32 v{t4}, v{lane}, 1, 1")
    a.e(f"v_lshl_add_u32 v{t3}, v{t4}, 3, v{t3}")
    a.e(f"v_lshl_add_u32 v{t3}, v{t2}, 8, v{t3}")
    a.e(f"v_lshl_add_u32 v{t3}, v{t1}, 11, v{t3}")
    for T in range(4):
        a.e(f"v_xor_b32 v{VA+T}, {T<<6}, v{t3}")
    a.e(f"v_lshlrev_b32 v{HI1K}, 10, v{t1}")
    a.e(f"v_lshlrev_b32 v{LANE16}, 4, v{lane}")
    a.e(f"v_add_u32 v{WRA}, s29, v{LANE16}")

    def make_ka():
        u0, u1, u2 = 252, 253, 255
        a.e(f"v_and_b32 v{u0}, 31, v{lane}")
        a.e(f"v_lshrrev_b32 v{u1}, 5, v{lane}")
        a.e(f"v_and_b32 v{u2}, 15, v{u0}")
        a.e(f"v_xor_b32 v{u2}, v{u2}, v{u1}")
        a.e(f"v_lshlrev_b32 v{u2}, 4, v{u2}")
        a.e(f"v_lshl_add_u32 v{u2}, v{u0}, 8, v{u2}")
        for s_ in range(8):
            a.e(f"v_xor_b32 v{KA+s_}, {s_<<5}, v{u2}")
    addr_of = {}; dma_id = {}; x_id = {}; state = {}
    fillers = []
    def now_or_later(fs, later):
        for f in fs:
            if later: fillers.append(f)
            else: f()
    def flush_until(cond):
        while not cond():
            fillers.pop(0)()
    NTQ = " nt" if OPT.get("ntq") else ""
    def issue_tile(tile, addr, later=False):
        kind, idx = tile
        addr_of[tile] = addr
        fs = []
        for p in range(2):
            def f(p=p):
                a.e(f"s_add_u32 m0, s29, {addr}")
                if kind == "W":
                    a.e(f"s_add_u32 s31, s26, {idx*64*8192}")
                else:
                    a.e(f"s_add_u32 s31, s27, {idx*16384}")
                for i in (2*p, 2*p+1):
                    if kind == "W":
                        r = a.vm(f"buffer_load_dwordx4 v{DW+i}, s[8:11], s31 offen offset:{i*1024}{NTQ} lds")
                    elif kind == "K":
                        r = a.vm(f"buffer_load_dwordx4 v{DK+i}, s[12:15], s31 offen offset:{i*1024}{NT} lds")
                    else:
                        r = a.vm(f"buffer_load_dwordx4 v{DV}, s[16:19], s31 offen offset:{i*1024}{NT} lds")
                if p == 1: dma_id[tile] = r
            fs.append(f)
        now_or_later(fs, later)
    pre_id = {}
    def issue_pre(tile, slot):
        kind, idx = tile
        a.e(f"s_add_u32 s31, s27, {idx*16384}")
        for i in range(4):
            d = vr(KVP + 16*slot + 4*i, 4)
            if kind == "K":
                pre_id[tile] = a.vm(f"buffer_load_dwordx4 {d}, v{DK+i}, s[12:15], s31 offen offset:{i*1024}{NT}")
            else:
                pre_id[tile] = a.vm(f"buffer_load_dwordx4 {d}, v{DV}, s[16:19], s31 offen offset:{i*1024}{NT}")
    def spill_pre(tile, slot, addr):
        addr_of[tile] = addr
        a.wait(vm=pre_id[tile])
        for i in range(4):
            state["prew", tile] = a.lg(f"ds_write_b128 v{WRA}, {vr(KVP + 16*slot + 4*i, 4)} offset:{addr + i*1024}")
    def issue_x(t, later=False):
        fs = []
        for p in range(2):
            def f(p=p):
                if p == 0 and ("xr", t - 2) in state:
                    a.wait(lg=state["xr", t - 2])
                a.e(f"s_add_u32 m0, s29, {XL + (t%2)*16384}")
                a.e(f"s_add_u32 s37, s25, {t*128}")
                if p == 1: a.e("s_mov_b64 exec, s[38:39]")
                for i in (2*p, 2*p+1):
                    r = a.vm(f"buffer_load_dwordx4 v{XO+i}, s[4:7], s37 offen offset:{i*1024}{NTQ} lds")
                if p == 1:
                    a.e("s_mov_b64 exec, -1")
                    x_id[t] = r
            fs.append(f)
        now_or_later(fs, later)

    cons = [("W", t) for t in range(16)]
    for g in range(4):
        cons += [("K", 2*g), ("K", 2*g+1), ("V", 2*g), ("V", 2*g+1)]
    kv_all = cons[16:]
    pre_tiles = kv_all[:NPRE]
    kvq = kv_all[NPRE:]
    if OPT.get("prio") in ("1", "2"): a.e("s_setprio 2")
    issue_x(0)
    issue_tile(("W", 0), 0)
    issue_x(1)
    issue_tile(("W", 1), 16384)
    issue_tile(("W", 2), 32768)
    PRE_AT = int(OPT.get("preat", -1))
    if PRE_AT < 0:
        for i, tl in enumerate(pre_tiles): issue_pre(tl, i)
    pre_left = list(enumerate(pre_tiles))
    def fill_region(addr, dma_only=False):
        if pre_left and not dma_only:
            i, tl = pre_left.pop(0)
            spill_pre(tl, i, addr)
        elif kvq:
            issue_tile(kvq.pop(0), addr, True)
    def sync(n):
        tile = cons[n]
        drain = (n <= 16)
        if tile in pre_tiles:
            if drain: a.e("s_waitcnt lgkmcnt(0)")
            else: a.wait(lg=state["prew", tile])
        else:
            flush_until(lambda: tile in dma_id)
            w = dma_id[tile]
            if tile[0] == "W":
                flush_until(lambda: n in x_id)
                w = max(w, x_id[n])
            a.wait(vm=w, lg=a.lg_seq if drain else None)
        a.e("s_barrier")
        if n == 0: a.stamp(1, "s[64:67]", 222)
        if n in (2, 4, 6, 8, 10, 12, 14): a.stamp(16 + n // 2, "s[64:67]", 222)
        if PRE_AT >= 0 and PRE_AT <= n < PRE_AT + 2 * NPRE and (n - PRE_AT) % 2 == 0:
            i = (n - PRE_AT) // 2
            fillers.append(lambda i=i: issue_pre(pre_tiles[i], i))
        if 1 <= n <= 13:
            issue_tile(("W", n + 2), addr_of[cons[n-1]], True)
        elif 14 <= n <= 16:
            fill_region(addr_of[cons[n-1]])
        elif n >= 18:
            fill_region(addr_of[cons[n-2]])
        if n == 15: fill_region(XL, True)
        if n == 16: fill_region(XL + 16384, True)

    cur_shift = {"K": 0, "V": 0}
    def adjust(kind, addr):
        regs = range(KA, KA+8) if kind == "K" else range(VA, VA+4)
        want = 65536 if addr >= 65536 else 0
        if cur_shift[kind] != want:
            d = want - cur_shift[kind]
            for r in regs:
                a.e(f"v_add_u32 v{r}, {d & 0xffffffff:#x}, v{r}")
            cur_shift[kind] = want
        return addr - want

    def softmax(g):
        a.stamp(3+2*g, "s[64:67]", 222)
        if OPT.get("prio") == "1": a.e("s_setprio 0")
        a.e("s_nop 7"); a.e("s_nop 5")
        for ch in range(4):
            b = S + 16*ch
            a.e(f"v_max3_f32 v{T0+ch}, v{b}, v{b+1}, v{b+2}")
        for k in range(6):
            for ch in range(4):
                b = S + 16*ch
                a.e(f"v_max3_f32 v{T0+ch}, v{T0+ch}, v{b+3+2*k}, v{b+4+2*k}")
        for ch in range(4):
            a.e(f"v_max_f32 v{T0+ch}, v{T0+ch}, v{S+16*ch+15}")
        a.e(f"v_max3_f32 v{T0}, v{T0}, v{T0+1}, v{T0+2}")
        a.e(f"v_max_f32 v{T0}, v{T0}, v{T0+3}")
        a.e(f"v_mov_b32 v{T0+1}, v{T0}")
        a.e("s_nop 1")
        a.e(f"v_permlane32_swap_b32 v{T0}, v{T0+1}")
        a.e("s_nop 1")
        if g == 0:
            a.e(f"v_max_f32 v{M}, v{T0}, v{T0+1}")
        else:
            a.e(f"v_max3_f32 v{T0}, v{T0}, v{T0+1}, v{M}")
            a.e(f"v_sub_f32 v{T0+1}, v{M}, v{T0}")
            a.e(f"v_mul_f32 v{T0+1}, s42, v{T0+1}")
            a.e(f"v_exp_f32 v{T0+1}, v{T0+1}")
            a.e(f"v_mov_b32 v{M}, v{T0}")
            a.e(f"v_mul_f32 v{L}, v{L}, v{T0+1}")
            for r in range(64):
                a.e(f"v_mul_f32 v{ACC+r}, v{ACC+r}, v{T0+1}")
                if r % 16 == 15 and fillers: fillers.pop(0)()
        a.e(f"v_mul_f32 v{T0}, s42, v{M}")
        for blk in range(8):
            b = S + 8*blk
            for r in range(8):
                a.e(f"v_fma_f32 v{b+r}, v{b+r}, s42, -v{T0}")
            for r in range(8):
                a.e(f"v_exp_f32 v{b+r}, v{b+r}")
            if fillers: fillers.pop(0)()
            if blk == 0:
                for r in range(4):
                    a.e(f"v_add_f32 v{T0+2+r}, v{b+r}, v{b+4+r}")
            else:
                for r in range(8):
                    a.e(f"v_add_f32 v{T0+2+(r&3)}, v{T0+2+(r&3)}, v{b+r}")
            for r in range(4):
                a.e(f"v_cvt_pk_bf16_f32 v{PF+4*blk+r}, v{b+2*r}, v{b+2*r+1}")
        a.e(f"v_add_f32 v{T0+2}, v{T0+2}, v{T0+3}")
        a.e(f"v_add_f32 v{T0+4}, v{T0+4}, v{T0+5}")
        a.e(f"v_add_f32 v{T0+2}, v{T0+2}, v{T0+4}")
        if g == 0:
            a.e(f"v_mov_b32 v{L}, v{T0+2}")
        else:
            a.e(f"v_add_f32 v{L}, v{L}, v{T0+2}")

    def qconv():
        a.stamp(2, "s[64:67]", 222)
        if OPT.get("prio") == "2": a.e("s_setprio 0")
        a.e("s_nop 7"); a.e("s_nop 5")
        for T in range(4):
            for u in range(2):
                for r in range(4):
                    a.e(f"v_cvt_pk_bf16_f32 v{QF+4*(2*T+u)+r}, v{ACC+16*T+8*u+2*r}, v{ACC+16*T+8*u+2*r+1}")
        a.e("s_nop 1")

    items = []
    for n, tile in enumerate(cons):
        kind, idx = tile
        if kind == "W":
            t = idx
            for s in range(4):
                for T in range(4):
                    first = (s == 0 and T == 0)
                    def pre_read(n=n, first=first, t=t):
                        if first:
                            sync(n)
                    def rd(buf, tile=tile, s=s, T=T, t=t):
                        sb = addr_of[tile]
                        if s == 0:
                            state["xr", t] = a.lg(f"ds_read_b128 {vr(XB+(t%2)*16+4*T,4)}, v{XRA+T} offset:{(t%2)*16384}")
                        if s == 2 and T == 0 and t + 2 < 16: issue_x(t + 2, True)
                        a.lg(f"ds_read_b64_tr_b16 {vr(buf,2)}, v{VA+T} offset:{sb + s*4096}")
                        return a.lg(f"ds_read_b64_tr_b16 {vr(buf+2,2)}, v{VA+T} offset:{sb + s*4096 + 1024}")
                    def mm(buf, idx=idx, s=s, T=T, t=t):
                        c = "0" if (idx == 0 and s == 0) else vr(ACC+16*T, 16)
                        a.e(f"v_mfma_f32_32x32x16_bf16 {vr(ACC+16*T,16)}, {vr(buf,4)}, {vr(XB+(t%2)*16+4*s,4)}, {c}")
                    items.append(Item(pre_read, rd, None, mm))
        elif kind == "K":
            jj = idx & 1
            for s in range(8):
                for ks in range(2):
                    first = (s == 0 and ks == 0)
                    def pre_read(n=n, first=first, tile=tile):
                        if first:
                            sync(n)
                            if tile == ("K", 0):
                                flush_until(lambda: not fillers)
                                make_ka()
                            state[tile] = adjust("K", addr_of[tile])
                    def rd(buf, tile=tile, s=s, ks=ks):
                        return a.lg(f"ds_read_b128 {vr(buf,4)}, v{KA+s} offset:{state[tile] + ks*8192}")
                    def pm(idx=idx, first=first):
                        if idx == 0 and first:
                            qconv()
                    def mm(buf, s=s, ks=ks, jj=jj):
                        d = S + 16*(2*jj+ks)
                        c = "0" if s == 0 else vr(d, 16)
                        a.e(f"v_mfma_f32_32x32x16_bf16 {vr(d,16)}, {vr(buf,4)}, {vr(QF+4*s,4)}, {c}")
                    items.append(Item(pre_read, rd, pm, mm))
        else:
            vv = idx & 1
            for u in range(4):
                for T in range(4):
                    first = (u == 0 and T == 0)
                    def pre_read(n=n, first=first, tile=tile, idx=idx):
                        if first:
                            sync(n)
                            if idx == 0:
                                for T_ in range(4):
                                    a.e(f"v_sub_u32 v{VA+T_}, v{VA+T_}, v{HI1K}")
                            state[tile] = adjust("V", addr_of[tile])
                    def rd(buf, tile=tile, u=u, T=T):
                        sb = state[tile]
                        a.lg(f"ds_read_b64_tr_b16 {vr(buf,2)}, v{VA+T} offset:{sb + u*4096}")
                        return a.lg(f"ds_read_b64_tr_b16 {vr(buf+2,2)}, v{VA+T} offset:{sb + u*4096 + 2048}")
                    def pm(idx=idx, first=first):
                        if first and idx % 2 == 0:
                            softmax(idx // 2)
                            if OPT.get("prio") == "1": a.e("s_setprio 2")
                            a.stamp(4+idx, "s[64:67]", 222)
                            a.e("s_nop 1")
                    def mm(buf, idx=idx, u=u, T=T, vv=vv):
                        c = "0" if (idx == 0 and u == 0) else vr(ACC+16*T, 16)
                        a.e(f"v_mfma_f32_32x32x16_bf16 {vr(ACC+16*T,16)}, {vr(buf,4)}, {vr(PF+4*(4*vv+u),4)}, {c}")
                    items.append(Item(pre_read, rd, pm, mm))
    run_pipeline(a, items, AF, NBUF, NRING, fillers)
    assert not fillers

    a.c("---- epilogue")
    a.stamp(11, "s[64:67]", 222)
    a.stamp(13, "s[64:67]", 222, True)
    a.e(f"v_mov_b32 v{T0+1}, v{L}")
    a.e("s_nop 1")
    a.e(f"v_permlane32_swap_b32 v{L}, v{T0+1}")
    a.e("s_nop 1")
    a.e(f"v_add_f32 v{L}, v{L}, v{T0+1}")
    a.e(f"v_rcp_f32 v{L}, v{L}")
    a.e("s_nop 7"); a.e("s_nop 3")
    for r in range(64):
        a.e(f"v_mul_f32 v{ACC+r}, v{ACC+r}, v{L}")
    for T in range(4):
        for u in range(2):
            for r in range(4):
                a.e(f"v_cvt_pk_bf16_f32 v{S+4*(2*T+u)+r}, v{ACC+16*T+8*u+2*r}, v{ACC+16*T+8*u+2*r+1}")
    if OPT.get("omask"):
        a.e("s_mov_b32 s82, -1"); a.e("s_mov_b32 s83, -1")
        a.e("s_cmp_eq_u32 s24, 3")
        a.e("s_cselect_b32 s82, 0xffff, s82")
        a.e("s_cselect_b32 s83, 0xffff, s83")
        a.e("s_mov_b64 exec, s[82:83]")
    for T in range(4):
        for u in range(2):
            ks = 2*T + u
            if ks % 4 == 0 and ks > 0:
                a.e("s_add_u32 s28, s28, 4096")
            a.vm(f"buffer_store_dwordx4 {vr(S+4*ks,4)}, v{LANE16}, s[20:23], s28 offen offset:{(ks%4)*1024}{OST}")
    if OPT.get("omask"): a.e("s_mov_b64 exec, -1")
    if OPT.get("wend", "1") == "1":
        if OPT.get("wfirst"):
            a.e("s_cmp_ge_u32 s34, 4" if OPT.get("wfirst") == "1" else "s_cmp_lt_u32 s34, 4")
            a.e("s_cbranch_scc1 L_attn_done")
            a.e("s_and_b32 s34, s34, 3")
            a.e("s_lshl_b32 s31, s33, 2")
            a.e("s_add_u32 s31, s31, s34")
            a.e("s_lshl_b32 s31, s31, 2")
            a.e("s_add_u32 s31, s31, s24")
            a.e(f"v_lshlrev_b32 v{T0}, 3, v{LANE16}")
            a.e("s_lshl_b32 s31, s31, 14")
            a.vm(f"buffer_load_dword v{T0+1}, v{T0}, s[76:79], s31 offen")
            a.e("s_add_u32 s31, s31, 8192")
            a.vm(f"buffer_load_dword v{T0+2}, v{T0}, s[76:79], s31 offen")
        else:
            a.e("s_lshl_b32 s31, s33, 3")
            a.e("s_add_u32 s31, s31, s34")
            a.e("s_lshl_b32 s31, s31, 2")
            a.e("s_add_u32 s31, s31, s24")
            a.e(f"v_lshlrev_b32 v{T0}, 3, v{LANE16}")
            a.e("s_lshl_b32 s31, s31, 13")
            a.vm(f"buffer_load_dword v{T0+1}, v{T0}, s[76:79], s31 offen")
    a.label("L_attn_done")
    a.e("s_endpgm")
    return a.text()

def gen_oproj():
    a = Asm()
    NSB = int(OPT.get("nsb", 5))
    NS = int(OPT.get("ns2", 8)); SLOT = 16384
    ACC = 0
    AF = 32
    VA = 64
    DW = 68
    XO = 72
    BF = 80
    NBUF = int(OPT.get("nbuf2", 6)); NRING = 8
    a.label("oproj_kernel")
    a.e("s_cmp_ge_u32 s2, 256")
    a.e("s_cbranch_scc1 L_oproj_done")
    a.e("s_load_dwordx2 s[44:45], s[0:1], 32")
    a.e("s_load_dwordx2 s[46:47], s[0:1], 72")
    a.e("s_load_dwordx2 s[48:49], s[0:1], 80")
    a.e("s_load_dwordx2 s[50:51], s[0:1], 96")
    a.e("v_lshrrev_b32 v73, 6, v0")
    a.e("v_and_b32 v74, 63, v0")
    a.e("s_nop 0")
    a.e("v_readfirstlane_b32 s24, v73")
    a.e("s_and_b32 s30, s2, 7")
    a.e("s_lshr_b32 s31, s2, 3")
    a.e("s_lshr_b32 s32, s30, 2")
    a.e("s_bfe_u32 s33, s30, 0x10001")
    a.e("s_lshl_b32 s33, s33, 2")
    a.e("s_lshr_b32 s34, s31, 3")
    a.e("s_add_u32 s33, s33, s34")
    a.e("s_and_b32 s34, s30, 1")
    a.e("s_lshl_b32 s34, s34, 3")
    a.e("s_and_b32 s35, s31, 7")
    a.e("s_add_u32 s34, s34, s35")
    if OPT.get("map2"):
        a.e("s_lshr_b32 s33, s31, 2")
        a.e("s_and_b32 s34, s30, 3")
        a.e("s_lshl_b32 s34, s34, 2")
        a.e("s_and_b32 s35, s31, 3")
        a.e("s_add_u32 s34, s34, s35")
    a.e("s_lshl_b32 s25, s32, 3")
    a.e("s_add_u32 s25, s25, s33")
    a.e("s_lshl_b32 s25, s25, 2")
    a.e("s_add_u32 s25, s25, s24")
    a.e("s_lshl_b32 s25, s25, 18")
    a.e("s_lshl_b32 s26, s34, 7")
    a.e("s_mul_i32 s28, s33, 458752")
    a.e("s_lshl_b32 s35, s32, 11")
    a.e("s_add_u32 s28, s28, s35")
    a.e("s_add_u32 s28, s28, s26")
    a.e("s_lshl_b32 s29, s24, 12")
    a.e("s_add_u32 s54, s33, s34")
    a.e("s_and_b32 s54, s54, 7")
    a.e("s_lshl_b32 s54, s54, 2" if OPT.get("rot2") else "s_mov_b32 s54, 0")
    a.e("s_mov_b32 s38, -1"); a.e("s_mov_b32 s39, -1")
    a.e("s_cmp_eq_u32 s24, 3")
    a.e("s_cselect_b32 s38, 0xffff, s38")
    a.e("s_cselect_b32 s39, 0xffff, s39")
    a.e("s_waitcnt lgkmcnt(0)")
    a.e("s_cmp_eq_u32 s32, 0")
    a.e("s_cselect_b32 s8, s44, s46")
    a.e("s_cselect_b32 s9, s45, s47")
    a.e("s_mov_b32 s10, 0x800000"); a.e("s_mov_b32 s11, 0x00020000")
    a.e("s_mov_b32 s4, s50"); a.e("s_mov_b32 s5, s51")
    a.e("s_mov_b32 s6, 0x1000000"); a.e("s_mov_b32 s7, 0x00020000")
    a.e("s_mov_b32 s20, s48"); a.e("s_mov_b32 s21, s49")
    a.e("s_mov_b32 s22, 3670016"); a.e("s_mov_b32 s23, 0x00020000")
    lane = 74
    if OPT.get("stamp"):
        a.e("s_mov_b32 s64, s50"); a.e("s_mov_b32 s65, s51"); a.e("s_mov_b32 s66, 0x4000000"); a.e("s_mov_b32 s67, 0x00020000")
        a.e("s_lshl_b32 s72, s2, 2"); a.e("s_add_u32 s72, s72, s24"); a.e("s_lshl_b32 s72, s72, 8"); a.e("s_add_u32 s72, s72, 0x2100000")
        a.stamp(0, "s[64:67]", 75)
        a.stamp(12, "s[64:67]", 75, True)
    a.e(f"v_lshrrev_b32 v75, 3, v{lane}")
    a.e(f"v_and_b32 v76, 7, v{lane}")
    a.e(f"v_bfe_u32 v77, v{lane}, 4, 1")
    a.e("v_lshlrev_b32 v77, 2, v77")
    a.e("v_xor_b32 v76, v76, v77")
    a.e("s_lshl_b32 s30, s24, 16")
    a.e("v_lshlrev_b32 v75, 11, v75")
    a.e("v_add_u32 v75, s30, v75")
    a.e("v_lshl_add_u32 v75, v76, 4, v75")
    for i in range(4):
        a.e(f"v_add_u32 v{DW+i}, {i*(8*2048-1024)}, v75")
    a.e(f"v_lshrrev_b32 v75, 5, v{lane}")
    a.e(f"v_bfe_u32 v76, v{lane}, 2, 2")
    a.e(f"v_bfe_u32 v77, v{lane}, 4, 1")
    a.e(f"v_and_b32 v78, 1, v{lane}")
    a.e("v_lshl_add_u32 v77, v77, 1, v78")
    a.e(f"v_bfe_u32 v78, v{lane}, 3, 1")
    a.e("v_lshl_add_u32 v77, v78, 2, v77")
    a.e("v_lshlrev_b32 v77, 4, v77")
    a.e(f"v_bfe_u32 v78, v{lane}, 1, 1")
    a.e("v_lshl_add_u32 v77, v78, 3, v77")
    a.e("v_lshl_add_u32 v77, v76, 7, v77")
    a.e("v_lshl_add_u32 v77, v75, 10, v77")
    for T in range(2):
        a.e(f"v_xor_b32 v{VA+T}, {T<<6}, v77")
        a.e(f"v_add_u32 v{VA+2+T}, 0x10000, v{VA+T}")
    a.e(f"v_lshlrev_b32 v{XO}, 4, v{lane}")
    a.e(f"v_and_b32 v76, 31, v{lane}")
    a.e("s_lshl_b32 s30, s24, 5")
    a.e("v_add_u32 v76, s30, v76")
    a.e("v_lshlrev_b32 v75, 4, v75")
    a.e("v_lshl_add_u32 v78, v76, 12, v75")
    a.e("v_cmp_gt_u32 vcc, 112, v76")
    a.e("s_nop 1")
    a.e("s_mov_b64 s[40:41], vcc")
    NT_ = 32
    dma_id = {}; b_id = {}
    def issue_tile(t):
        slot = t % NS
        a.e(f"s_add_u32 s30, s29, {slot*SLOT}")
        a.e("s_mov_b32 m0, s30")
        a.e(f"s_add_u32 s31, s54, {t}"); a.e("s_and_b32 s31, s31, 31"); a.e("s_lshl_b32 s31, s31, 18"); a.e("s_add_u32 s31, s31, s26")
        for i in range(4):
            dma_id[t] = a.vm(f"buffer_load_dwordx4 v{DW+i}, s[8:11], s31 offen offset:{i*1024}{' nt' if OPT.get('ntw') else ''} lds")
    def issue_b(t):
        base = BF + (t % NSB) * 32
        a.e("s_mov_b64 exec, s[38:39]")
        for hf in range(2):
            a.e(f"s_add_u32 s31, s54, {t}"); a.e("s_and_b32 s31, s31, 31"); a.e("s_lshl_b32 s31, s31, 13"); a.e("s_add_u32 s31, s31, s25"); a.e(f"s_add_u32 s31, s31, {hf*4096}")
            for s in range(4):
                b_id[t] = a.vm(f"buffer_load_dwordx4 {vr(base+4*(4*hf+s),4)}, v{XO}, s[4:7], s31 offen offset:{s*1024}{' nt' if OPT.get('nto') else ''}")
        a.e("s_mov_b64 exec, -1")
    fillers = []
    TOUCH = OPT.get("touch")
    def touch(part):
        a.e("s_lshr_b32 s52, s2, 3")
        a.e("s_lshl_b32 s52, s52, 2")
        a.e("s_add_u32 s52, s52, s24")
        a.e("s_lshl_b32 s52, s52, 15")
        a.e("s_and_b32 s53, s2, 3")
        a.e("s_lshl_b32 s53, s53, 9")
        a.e("s_add_u32 s52, s52, s53")
        a.e(f"s_add_u32 s52, s52, {part*2048*2048}")
        a.e(f"v_lshrrev_b32 v75, 2, v{lane}")
        a.e(f"v_and_b32 v76, 3, v{lane}")
        a.e("v_lshlrev_b32 v76, 7, v76")
        a.e("v_lshl_add_u32 v75, v75, 11, v76")
        a.vm(f"buffer_load_dword v79, v75, s[8:11], s52 offen{' nt' if TOUCH == 'nt' else ''}")
    if TOUCH: touch(0)
    def queue_tile(t):
        slot = t % NS
        def mk(i):
            def f():
                if i == 0:
                    a.e(f"s_add_u32 s30, s29, {slot*SLOT}")
                    a.e("s_mov_b32 m0, s30")
                    a.e(f"s_add_u32 s36, s54, {t}"); a.e("s_and_b32 s36, s36, 31"); a.e("s_lshl_b32 s36, s36, 18"); a.e("s_add_u32 s36, s36, s26")
                dma_id[t] = a.vm(f"buffer_load_dwordx4 v{DW+i}, s[8:11], s36 offen offset:{i*1024}{' nt' if OPT.get('ntw') else ''} lds")
            return f
        for i in range(4): fillers.append(mk(i))
    def queue_b(t):
        base = BF + (t % NSB) * 32
        def mk(j):
            def f():
                hf, s_ = j // 4, j % 4
                if s_ == 0:
                    a.e(f"s_add_u32 s37, s54, {t}"); a.e("s_and_b32 s37, s37, 31"); a.e("s_lshl_b32 s37, s37, 13"); a.e("s_add_u32 s37, s37, s25"); a.e(f"s_add_u32 s37, s37, {hf*4096}")
                a.e("s_mov_b64 exec, s[38:39]")
                b_id[t] = a.vm(f"buffer_load_dwordx4 {vr(base+4*j,4)}, v{XO}, s[4:7], s37 offen offset:{s_*1024}{' nt' if OPT.get('nto') else ''}")
                a.e("s_mov_b64 exec, -1")
            return f
        for j in range(8): fillers.append(mk(j))
    for t in range(max(NS, NSB - 1)):
        if t < NS: issue_tile(t)
        if t < NSB - 1: issue_b(t)
    items = []
    for t in range(NT_):
        for s in range(8):
            for T in range(2):
                first = (s == 0 and T == 0)
                def pre_read(t=t, first=first):
                    if first:
                        a.c(f"---- step {t}")
                        a.wait(vm=dma_id[t])
                        a.e("s_barrier")
                        if t % 4 == 0: a.stamp(16 + t // 4, "s[64:67]", 75)
                        if TOUCH and t == 4: touch(1)
                        if t >= 2 and t + NS - 2 < NT_: queue_tile(t + NS - 2)
                def rd(buf, t=t, s=s, T=T):
                    sb = (t % NS) * SLOT
                    va = VA + T
                    if sb >= 65536: va += 2; sb -= 65536
                    assert sb < 65536
                    a.lg(f"ds_read_b64_tr_b16 {vr(buf,2)}, v{va} offset:{sb + s*2048}")
                    return a.lg(f"ds_read_b64_tr_b16 {vr(buf+2,2)}, v{va} offset:{sb + s*2048 + 512}")
                def pm(t=t, first=first):
                    if first:
                        a.wait(vm=b_id[t])
                        if t + NSB - 1 < NT_: queue_b(t + NSB - 1)
                def mm(buf, t=t, s=s, T=T):
                    bb = BF + (t % NSB) * 32
                    c = "0" if (t == 0 and s == 0) else vr(ACC+16*T, 16)
                    a.e(f"v_mfma_f32_32x32x16_bf16 {vr(ACC+16*T,16)}, {vr(buf,4)}, {vr(bb+4*s,4)}, {c}")
                items.append(Item(pre_read, rd, pm, mm))
    run_pipeline(a, items, AF, NBUF, NRING, fillers)
    a.stamp(11, "s[64:67]", 75)
    a.stamp(13, "s[64:67]", 75, True)
    a.e("s_nop 7"); a.e("s_nop 5")
    for T in range(2):
        for u in range(2):
            for r in range(4):
                a.e(f"v_cvt_pk_bf16_f32 v{BF+4*(2*T+u)+r}, v{ACC+16*T+8*u+2*r}, v{ACC+16*T+8*u+2*r+1}")
    a.e("s_and_saveexec_b64 s[42:43], s[40:41]")
    a.e("s_cbranch_execz L_oproj_done")
    for T in range(2):
        for u in range(2):
            a.vm(f"buffer_store_dwordx4 {vr(BF+4*(2*T+u),4)}, v78, s[20:23], s28 offen offset:{T*64+u*32}{FST}")
    a.label("L_oproj_done")
    a.e("s_endpgm")
    return a.text()

def kd(name, vgpr, sgpr=102):
    return f""".amdhsa_kernel {name}
  .amdhsa_next_free_vgpr {vgpr}
  .amdhsa_next_free_sgpr {sgpr}
  .amdhsa_accum_offset {(vgpr+3)//4*4}
  .amdhsa_group_segment_fixed_size 0
  .amdhsa_kernarg_size 104
  .amdhsa_user_sgpr_count 2
  .amdhsa_user_sgpr_kernarg_segment_ptr 1
  .amdhsa_system_sgpr_workgroup_id_x 1
.end_amdhsa_kernel
"""

LDS2 = 16384 * int(OPT.get("ns2", 8))
hdr = f"""; fused MHA x2: kernel 1 = Q projection + attention per (block, batch, head); kernel 2 = output projection
; @launch kernel=attn_kernel grid=(512,1,1) block=(256,1,1) lds=81920
; @launch kernel=oproj_kernel grid=(256,1,1) block=(256,1,1) lds={LDS2}
.amdgcn_target "amdgcn-amd-amdhsa--gfx950"
.text
"""
body = hdr
for name, fn in (("attn_kernel", gen_attn), ("oproj_kernel", gen_oproj)):
    body += f".globl {name}\n.p2align 8\n.type {name},@function\n" + fn()
body += '.section .rodata,"a"\n.p2align 6\n' + kd("attn_kernel", 256) + ".p2align 6\n" + kd("oproj_kernel", 80 + 32 * int(OPT.get("nsb", 5)))
open(OUT, "w").write(body)
```

```python
import sys, math, struct

OUT = sys.argv[1] if len(sys.argv) > 1 else "out.s"
OPT = dict(x.split("=") for x in sys.argv[2:])

class Asm:
    def __init__(self):
        self.lines = []
        self.vm_seq = 0
        self.lg_seq = 0
    def e(self, s): self.lines.append("    " + s)
    def label(self, s): self.lines.append(s + ":")
    def c(self, s): self.lines.append("    ; " + s)
    def vm(self, s):
        self.e(s); self.vm_seq += 1
        return self.vm_seq
    def lg(self, s):
        self.e(s); self.lg_seq += 1
        return self.lg_seq
    def wait(self, vm=None, lg=None):
        parts = []
        if vm is not None:
            n = self.vm_seq - vm; assert n >= 0
            parts.append(f"vmcnt({min(n, 63)})")
        if lg is not None:
            n = self.lg_seq - lg; assert n >= 0
            parts.append(f"lgkmcnt({min(n, 15)})")
        self.e("s_waitcnt " + " ".join(parts))
    def text(self): return "\n".join(self.lines) + "\n"
    def stamp(self, idx, srd, vtmp, real=False):
        if not OPT.get("stamp"): return
        if OPT.get("stamp") == "2" and idx not in (0, 11, 12, 13): return
        self.e("s_memrealtime s[70:71]" if real else "s_memtime s[70:71]")
        self.e("s_waitcnt lgkmcnt(0)")
        self.e(f"v_mov_b32 v{vtmp}, s70")
        self.e(f"v_mov_b32 v{vtmp+1}, s72")
        self.vm(f"buffer_store_dword v{vtmp}, v{vtmp+1}, {srd}, 0 offen offset:{idx*4}")

def vr(b, n=1):
    return f"v{b}" if n == 1 else f"v[{b}:{b+n-1}]"

SCALE = 128 ** -0.5
CEXP = SCALE * math.log2(math.e)
def f32bits(x): return "0x%08x" % struct.unpack("<I", struct.pack("<f", x))[0]
NT = " nt"

WAITG = int(OPT.get("waitg", 2))
FST = {"": "", "nt": " nt", "sc1": " sc1", "sc01": " sc0 sc1"}[OPT.get("fst", "")]
class Item:
    def __init__(self, pre_read=None, reads=None, pre_mfma=None, mfma=None):
        self.pre_read = pre_read
        self.reads = reads
        self.pre_mfma = pre_mfma
        self.mfma = mfma

VFILL = []
def run_pipeline(a, items, AF, NBUF, NRING, fillers=None, per=1):
    n = len(items)
    if fillers is None: fillers = []
    ids = {}
    def issue(j):
        it = items[j]
        if it.pre_read: it.pre_read()
        ids[j] = it.reads(AF + 4 * (j % NRING))
    for j in range(min(NBUF, n)):
        issue(j)
    for i in range(n):
        it = items[i]
        if it.pre_mfma: it.pre_mfma()
        if i % WAITG == 0:
            a.wait(lg=ids[min(i + WAITG - 1, n - 1)])
        it.mfma(AF + 4 * (i % NRING))
        for _ in range(per):
            if fillers: fillers.pop(0)()
        for _ in range(int(OPT.get("vper", 7))):
            if VFILL: a.e(VFILL.pop(0))
        if i + NBUF < n:
            issue(i + NBUF)

def gen_attn():
    a = Asm()
    ACC = 0
    S = 64
    QF = 128
    PF = 160
    AF = 192
    NXS = int(OPT.get("nxs", 3))
    XS = 64
    XB = 112
    KVP = 144
    KA = 224
    VA = 232
    DK = 236
    DV = 240
    HI1K = 241; LANE16 = 242
    M = 243; L = 244
    T0 = 245
    DW = 224
    XO = 228
    LANE = 251
    WRA = 254
    XRA = 243
    XWA = 247
    TMP = 192
    NBUF = int(OPT.get("nbuf", 6)); NRING = 7
    NWS = 3
    XL = 49152
    NPRE = int(OPT.get("npre", 3))
    OST = {"": "", "nt": " nt", "sc1": " sc1", "sc01": " sc0 sc1"}[OPT.get("ost", "")]

    a.label("attn_kernel")
    a.e("s_cmp_ge_u32 s2, 512")
    a.e("s_cbranch_scc1 L_attn_done")
    a.e("s_load_dwordx8 s[44:51], s[0:1], 0")
    a.e("s_load_dwordx8 s[52:59], s[0:1], 40")
    a.e("s_load_dwordx2 s[60:61], s[0:1], 96")
    a.e("s_load_dwordx2 s[62:63], s[0:1], 32")
    a.e("s_load_dwordx2 s[68:69], s[0:1], 72")
    lane = LANE
    a.e(f"v_lshrrev_b32 v{TMP}, 6, v0")
    a.e(f"v_and_b32 v{lane}, 63, v0")
    a.e("s_nop 0")
    a.e(f"v_readfirstlane_b32 s24, v{TMP}")
    a.e("s_and_b32 s30, s2, 7")
    a.e("s_lshr_b32 s31, s2, 3")
    if OPT.get("mix") == "1":
        a.e("s_and_b32 s32, s31, 1")
        a.e("s_lshl_b32 s33, s30, 2")
        a.e("s_bfe_u32 s34, s31, 0x20001")
        a.e("s_add_u32 s33, s33, s34")
    elif OPT.get("mix") == "2":
        a.e("s_lshr_b32 s32, s31, 5")
        a.e("s_xor_b32 s32, s32, 1")
        a.e("s_lshl_b32 s33, s30, 2")
        a.e("s_and_b32 s34, s31, 3")
        a.e("s_add_u32 s33, s33, s34")
        a.e("s_lshl_b32 s31, s31, 1")
        a.e("s_and_b32 s31, s31, 63")
    elif OPT.get("mix") == "3":
        a.e("s_lshr_b32 s32, s31, 5")
        a.e("s_lshl_b32 s33, s30, 2")
        a.e("s_and_b32 s34, s31, 3")
        a.e("s_add_u32 s33, s33, s34")
        a.e("s_lshl_b32 s31, s31, 1")
        a.e("s_and_b32 s31, s31, 63")
    else:
        a.e("s_lshr_b32 s32, s30, 2")
        a.e("s_and_b32 s33, s30, 3")
        a.e("s_lshl_b32 s33, s33, 3")
        a.e("s_and_b32 s34, s31, 7")
        a.e("s_add_u32 s33, s33, s34")
    a.e("s_lshr_b32 s34, s31, 3")
    a.e("s_mul_i32 s25, s34, 229376")
    a.e("s_lshl_b32 s26, s33, 8")
    a.e("s_lshl_b32 s27, s34, 5")
    a.e("s_add_u32 s27, s27, s33")
    a.e("s_lshl_b32 s27, s27, 17")
    a.e("s_lshl_b32 s28, s32, 3")
    a.e("s_add_u32 s28, s28, s34")
    a.e("s_lshl_b32 s28, s28, 2")
    a.e("s_add_u32 s28, s28, s24")
    a.e("s_lshl_b32 s28, s28, 18")
    a.e("s_lshl_b32 s35, s33, 13")
    a.e("s_add_u32 s28, s28, s35")
    a.e("s_lshl_b32 s29, s24, 12")
    a.e("s_lshl_b32 s36, s24, 11")
    a.e(f"s_mov_b32 s42, {f32bits(CEXP)}")
    a.e("s_add_u32 s43, s33, s34")
    a.e("s_and_b32 s43, s43, 7")
    a.e("s_lshl_b32 s43, s43, 1" if OPT.get("rot") else "s_mov_b32 s43, 0")
    a.e("s_mov_b32 s38, -1"); a.e("s_mov_b32 s39, -1")
    a.e("s_cmp_eq_u32 s24, 3")
    a.e("s_cselect_b32 s38, 0, s38")
    a.e("s_cselect_b32 s39, 0, s39")
    a.e("s_waitcnt lgkmcnt(0)")
    a.e("s_cmp_eq_u32 s32, 0")
    for d, (sa, sb) in ((4, (44, 52)), (12, (46, 54)), (16, (48, 56)), (8, (50, 58)), (76, (62, 68))):
        a.e(f"s_cselect_b32 s{d}, s{sa}, s{sb}")
        a.e(f"s_cselect_b32 s{d+1}, s{sa+1}, s{sb+1}")
    a.e("s_mov_b32 s6, 1835008"); a.e("s_mov_b32 s7, 0x00020000")
    a.e("s_mov_b32 s10, 0x800000"); a.e("s_mov_b32 s11, 0x00020000")
    a.e("s_mov_b32 s14, 0x2000000"); a.e("s_mov_b32 s15, 0x00020000")
    a.e("s_mov_b32 s18, 0x2000000"); a.e("s_mov_b32 s19, 0x00020000")
    a.e("s_mov_b32 s20, s60"); a.e("s_mov_b32 s21, s61")
    a.e("s_mov_b32 s22, 0x1000000"); a.e("s_mov_b32 s23, 0x00020000")
    a.e("s_mov_b32 s78, 0x800000"); a.e("s_mov_b32 s79, 0x00020000")
    if OPT.get("stamp"):
        a.e("s_mov_b32 s64, s60"); a.e("s_mov_b32 s65, s61"); a.e("s_mov_b32 s66, 0x4000000"); a.e("s_mov_b32 s67, 0x00020000")
        a.e("s_lshl_b32 s72, s2, 2"); a.e("s_add_u32 s72, s72, s24"); a.e("s_lshl_b32 s72, s72, 8"); a.e("s_add_u32 s72, s72, 0x2000000")
        a.stamp(0, "s[64:67]", 222)
        a.stamp(12, "s[64:67]", 222, True)
    t0, t1, t2, t3, t4 = TMP, TMP+1, TMP+2, TMP+3, TMP+4
    a.e(f"v_lshrrev_b32 v{t0}, 4, v{lane}")
    a.e(f"v_and_b32 v{t1}, 15, v{lane}")
    a.e(f"v_xor_b32 v{t2}, v{t0}, v{t1}")
    a.e(f"v_lshlrev_b32 v{t3}, 8, v{t0}")
    a.e(f"v_add_u32 v{t3}, s29, v{t3}")
    for i in range(4):
        a.e(f"v_xor_b32 v{t4}, {4*i}, v{t2}")
        a.e(f"v_lshl_add_u32 v{DK+i}, v{t4}, 4, v{t3}")
    a.e(f"v_lshlrev_b32 v{t4}, 2, v{t0}")
    a.e(f"v_xor_b32 v{t4}, v{t4}, v{t1}")
    a.e(f"v_lshl_add_u32 v{DV}, v{t4}, 4, v{t3}")
    a.e("s_lshl_b32 s30, s24, 17")
    a.e(f"v_lshlrev_b32 v{t3}, 13, v{t0}")
    a.e(f"v_add_u32 v{t3}, s30, v{t3}")
    a.e(f"v_lshl_add_u32 v{t3}, v{t4}, 4, v{t3}")
    for i in range(4):
        a.e(f"v_add_u32 v{DW+i}, {i*(4*8192-1024)}, v{t3}")
    a.e(f"v_and_b32 v{t0}, 31, v{lane}")
    a.e(f"v_lshrrev_b32 v{t1}, 5, v{lane}")
    a.e(f"v_bfe_u32 v{t2}, v{t0}, 1, 3")
    a.e(f"v_xor_b32 v{t2}, v{t2}, v{t1}")
    a.e(f"v_lshlrev_b32 v{t2}, 4, v{t2}")
    a.e(f"v_lshl_add_u32 v{t2}, v{t0}, 7, v{t2}")
    a.e(f"s_add_u32 s30, s29, {XL}")
    a.e(f"v_add_u32 v{t2}, s30, v{t2}")
    for s_ in range(4):
        a.e(f"v_xor_b32 v{XRA+s_}, {s_<<5}, v{t2}")
    a.e(f"v_lshrrev_b32 v{t2}, 3, v{lane}")
    a.e(f"v_and_b32 v{t3}, 7, v{lane}")
    a.e("s_lshl_b32 s31, s24, 16")
    a.e(f"v_lshlrev_b32 v{t2}, 11, v{t2}")
    a.e(f"v_add_u32 v{t2}, s31, v{t2}")
    a.e(f"v_lshrrev_b32 v{t4}, 4, v{lane}")
    a.e(f"v_xor_b32 v{t3}, v{t3}, v{t4}")
    for i in range(4):
        a.e(f"v_xor_b32 v{t4}, {(4*i)&7}, v{t3}")
        a.e(f"v_lshl_add_u32 v{t4}, v{t4}, 4, v{t2}")
        a.e(f"v_add_u32 v{XO+i}, {i*(16384-1024)}, v{t4}")
    a.e(f"v_bfe_u32 v{t2}, v{lane}, 2, 2")
    a.e(f"v_bfe_u32 v{t3}, v{lane}, 4, 1")
    a.e(f"v_and_b32 v{t4}, 1, v{lane}")
    a.e(f"v_lshl_add_u32 v{t3}, v{t3}, 1, v{t4}")
    a.e(f"v_lshl_add_u32 v{t3}, v{t2}, 2, v{t3}")
    a.e(f"v_lshlrev_b32 v{t3}, 4, v{t3}")
    a.e(f"v_bfe_u32 v{t4}, v{lane}, 1, 1")
    a.e(f"v_lshl_add_u32 v{t3}, v{t4}, 3, v{t3}")
    a.e(f"v_lshl_add_u32 v{t3}, v{t2}, 8, v{t3}")
    a.e(f"v_lshl_add_u32 v{t3}, v{t1}, 11, v{t3}")
    for T in range(4):
        a.e(f"v_xor_b32 v{VA+T}, {T<<6}, v{t3}")
    a.e(f"v_lshlrev_b32 v{HI1K}, 10, v{t1}")
    a.e(f"v_lshlrev_b32 v{LANE16}, 4, v{lane}")
    a.e(f"v_add_u32 v{WRA}, s29, v{LANE16}")

    def make_ka():
        u0, u1, u2 = 252, 253, 255
        a.e(f"v_and_b32 v{u0}, 31, v{lane}")
        a.e(f"v_lshrrev_b32 v{u1}, 5, v{lane}")
        a.e(f"v_and_b32 v{u2}, 15, v{u0}")
        a.e(f"v_xor_b32 v{u2}, v{u2}, v{u1}")
        a.e(f"v_lshlrev_b32 v{u2}, 4, v{u2}")
        a.e(f"v_lshl_add_u32 v{u2}, v{u0}, 8, v{u2}")
        for s_ in range(8):
            a.e(f"v_xor_b32 v{KA+s_}, {s_<<5}, v{u2}")
    addr_of = {}; dma_id = {}; x_id = {}; state = {}
    fillers = []
    def now_or_later(fs, later):
        for f in fs:
            if later: fillers.append(f)
            else: f()
    def flush_until(cond):
        while not cond():
            fillers.pop(0)()
    NTQ = " nt" if OPT.get("ntq") else ""
    def issue_tile(tile, addr, later=False):
        kind, idx = tile
        addr_of[tile] = addr
        fs = []
        for p in range(2):
            def f(p=p):
                a.e(f"s_add_u32 m0, s29, {addr}")
                if kind == "W":
                    a.e(f"s_add_u32 s31, s26, {idx*64*8192}")
                else:
                    a.e(f"s_add_u32 s31, s27, {idx*16384}")
                for i in (2*p, 2*p+1):
                    if kind == "W":
                        r = a.vm(f"buffer_load_dwordx4 v{DW+i}, s[8:11], s31 offen offset:{i*1024}{NTQ} lds")
                    elif kind == "K":
                        r = a.vm(f"buffer_load_dwordx4 v{DK+i}, s[12:15], s31 offen offset:{i*1024}{NT} lds")
                    else:
                        r = a.vm(f"buffer_load_dwordx4 v{DV}, s[16:19], s31 offen offset:{i*1024}{NT} lds")
                if p == 1: dma_id[tile] = r
            fs.append(f)
        now_or_later(fs, later)
    pre_id = {}
    def issue_pre(tile, slot):
        kind, idx = tile
        a.e(f"s_add_u32 s31, s27, {idx*16384}")
        for i in range(4):
            d = vr(KVP + 16*slot + 4*i, 4)
            if kind == "K":
                pre_id[tile] = a.vm(f"buffer_load_dwordx4 {d}, v{DK+i}, s[12:15], s31 offen offset:{i*1024}{NT}")
            else:
                pre_id[tile] = a.vm(f"buffer_load_dwordx4 {d}, v{DV}, s[16:19], s31 offen offset:{i*1024}{NT}")
    def spill_pre(tile, slot, addr):
        addr_of[tile] = addr
        a.wait(vm=pre_id[tile])
        for i in range(4):
            state["prew", tile] = a.lg(f"ds_write_b128 v{WRA}, {vr(KVP + 16*slot + 4*i, 4)} offset:{addr + i*1024}")
    def issue_x(t, later=False):
        fs = []
        for p in range(2):
            def f(p=p):
                if p == 0 and ("xr", t - 2) in state:
                    a.wait(lg=state["xr", t - 2])
                a.e(f"s_add_u32 m0, s29, {XL + (t%2)*16384}")
                a.e(f"s_add_u32 s37, s25, {t*128}")
                if p == 1: a.e("s_mov_b64 exec, s[38:39]")
                for i in (2*p, 2*p+1):
                    r = a.vm(f"buffer_load_dwordx4 v{XO+i}, s[4:7], s37 offen offset:{i*1024}{NTQ} lds")
                if p == 1:
                    a.e("s_mov_b64 exec, -1")
                    x_id[t] = r
            fs.append(f)
        now_or_later(fs, later)

    cons = [("W", t) for t in range(16)]
    for g in range(4):
        cons += [("K", 2*g), ("K", 2*g+1), ("V", 2*g), ("V", 2*g+1)]
    kv_all = cons[16:]
    pre_tiles = kv_all[:NPRE]
    kvq = kv_all[NPRE:]
    if OPT.get("prio") in ("1", "2"): a.e("s_setprio 2")
    issue_x(0)
    issue_tile(("W", 0), 0)
    issue_x(1)
    issue_tile(("W", 1), 16384)
    issue_tile(("W", 2), 32768)
    PRE_AT = int(OPT.get("preat", -1))
    if PRE_AT < 0:
        for i, tl in enumerate(pre_tiles): issue_pre(tl, i)
    pre_left = list(enumerate(pre_tiles))
    def fill_region(addr, dma_only=False):
        if pre_left and not dma_only:
            i, tl = pre_left.pop(0)
            spill_pre(tl, i, addr)
        elif kvq:
            issue_tile(kvq.pop(0), addr, True)
    def sync(n):
        tile = cons[n]
        drain = (n <= 16)
        if tile in pre_tiles:
            if drain: a.e("s_waitcnt lgkmcnt(0)")
            else: a.wait(lg=state["prew", tile])
        else:
            flush_until(lambda: tile in dma_id)
            w = dma_id[tile]
            if tile[0] == "W":
                flush_until(lambda: n in x_id)
                w = max(w, x_id[n])
            a.wait(vm=w, lg=a.lg_seq if drain else None)
        a.e("s_barrier")
        if n == 0: a.stamp(1, "s[64:67]", 222)
        if n in (2, 4, 6, 8, 10, 12, 14): a.stamp(16 + n // 2, "s[64:67]", 222)
        if PRE_AT >= 0 and PRE_AT <= n < PRE_AT + 2 * NPRE and (n - PRE_AT) % 2 == 0:
            i = (n - PRE_AT) // 2
            fillers.append(lambda i=i: issue_pre(pre_tiles[i], i))
        if 1 <= n <= 13:
            issue_tile(("W", n + 2), addr_of[cons[n-1]], True)
        elif 14 <= n <= 16:
            fill_region(addr_of[cons[n-1]])
        elif n >= 18:
            fill_region(addr_of[cons[n-2]])
        if n == 15: fill_region(XL, True)
        if n == 16: fill_region(XL + 16384, True)

    cur_shift = {"K": 0, "V": 0}
    def adjust(kind, addr):
        regs = range(KA, KA+8) if kind == "K" else range(VA, VA+4)
        want = 65536 if addr >= 65536 else 0
        if cur_shift[kind] != want:
            d = want - cur_shift[kind]
            for r in regs:
                a.e(f"v_add_u32 v{r}, {d & 0xffffffff:#x}, v{r}")
            cur_shift[kind] = want
        return addr - want

    def softmax(g):
        a.stamp(3+2*g, "s[64:67]", 222)
        if OPT.get("prio") == "1": a.e("s_setprio 0")
        a.e("s_nop 7"); a.e("s_nop 5")
        for ch in range(4):
            b = S + 16*ch
            a.e(f"v_max3_f32 v{T0+ch}, v{b}, v{b+1}, v{b+2}")
        for k in range(6):
            for ch in range(4):
                b = S + 16*ch
                a.e(f"v_max3_f32 v{T0+ch}, v{T0+ch}, v{b+3+2*k}, v{b+4+2*k}")
        for ch in range(4):
            a.e(f"v_max_f32 v{T0+ch}, v{T0+ch}, v{S+16*ch+15}")
        a.e(f"v_max3_f32 v{T0}, v{T0}, v{T0+1}, v{T0+2}")
        a.e(f"v_max_f32 v{T0}, v{T0}, v{T0+3}")
        a.e(f"v_mov_b32 v{T0+1}, v{T0}")
        a.e("s_nop 1")
        a.e(f"v_permlane32_swap_b32 v{T0}, v{T0+1}")
        a.e("s_nop 1")
        if g == 0:
            a.e(f"v_max_f32 v{M}, v{T0}, v{T0+1}")
        else:
            a.e(f"v_max3_f32 v{T0}, v{T0}, v{T0+1}, v{M}")
            a.e(f"v_sub_f32 v{T0+1}, v{M}, v{T0}")
            a.e(f"v_mul_f32 v{T0+1}, s42, v{T0+1}")
            a.e(f"v_exp_f32 v{T0+1}, v{T0+1}")
            a.e(f"v_mov_b32 v{M}, v{T0}")
            a.e(f"v_mul_f32 v{L}, v{L}, v{T0+1}")
            for r in range(64):
                a.e(f"v_mul_f32 v{ACC+r}, v{ACC+r}, v{T0+1}")
                if r % 16 == 15 and fillers: fillers.pop(0)()
        a.e(f"v_mul_f32 v{T0}, s42, v{M}")
        SPLIT = int(OPT.get("split", 4))
        PK = OPT.get("pk")
        for blk in range(8):
            b = S + 8*blk
            out = []
            if PK:
                for r in range(0, 8, 2):
                    out.append(f"v_pk_fma_f32 {vr(b+r,2)}, {vr(b+r,2)}, s[42:43], {vr(PKT,2)} op_sel_hi:[1,1,0] neg_lo:[0,0,1] neg_hi:[0,0,1]")
            else:
                for r in range(8):
                    out.append(f"v_fma_f32 v{b+r}, v{b+r}, s42, -v{T0}")
            for r in range(8):
                out.append(f"v_exp_f32 v{b+r}, v{b+r}")
            if blk == 0:
                for r in range(4):
                    out.append(f"v_add_f32 v{T0+2+r}, v{b+r}, v{b+4+r}")
            else:
                for r in range(8):
                    out.append(f"v_add_f32 v{T0+2+(r&3)}, v{T0+2+(r&3)}, v{b+r}")
            for r in range(4):
                out.append(f"v_cvt_pk_bf16_f32 v{PF+4*blk+r}, v{b+2*r}, v{b+2*r+1}")
            if blk == 7:
                out.append(f"v_add_f32 v{T0+2}, v{T0+2}, v{T0+3}")
                out.append(f"v_add_f32 v{T0+4}, v{T0+4}, v{T0+5}")
                out.append(f"v_add_f32 v{T0+2}, v{T0+2}, v{T0+4}")
                out.append(f"v_mov_b32 v{L}, v{T0+2}" if g == 0 else f"v_add_f32 v{L}, v{L}, v{T0+2}")
            if blk < SPLIT:
                for k, ins in enumerate(out):
                    a.e(ins)
                    if k == 15 and fillers: fillers.pop(0)()
            else:
                VFILL.extend(out)

    def qconv():
        a.stamp(2, "s[64:67]", 222)
        if OPT.get("prio") == "2": a.e("s_setprio 0")
        a.e("s_nop 7"); a.e("s_nop 5")
        for T in range(4):
            for u in range(2):
                for r in range(4):
                    a.e(f"v_cvt_pk_bf16_f32 v{QF+4*(2*T+u)+r}, v{ACC+16*T+8*u+2*r}, v{ACC+16*T+8*u+2*r+1}")
        a.e("s_nop 1")

    items = []
    for n, tile in enumerate(cons):
        kind, idx = tile
        if kind == "W":
            t = idx
            for s in range(4):
                for T in range(4):
                    first = (s == 0 and T == 0)
                    def pre_read(n=n, first=first, t=t):
                        if first:
                            sync(n)
                    def rd(buf, tile=tile, s=s, T=T, t=t):
                        sb = addr_of[tile]
                        if s == 0:
                            state["xr", t] = a.lg(f"ds_read_b128 {vr(XB+(t%2)*16+4*T,4)}, v{XRA+T} offset:{(t%2)*16384}")
                        if s == 2 and T == 0 and t + 2 < 16: issue_x(t + 2, True)
                        a.lg(f"ds_read_b64_tr_b16 {vr(buf,2)}, v{VA+T} offset:{sb + s*4096}")
                        return a.lg(f"ds_read_b64_tr_b16 {vr(buf+2,2)}, v{VA+T} offset:{sb + s*4096 + 1024}")
                    def mm(buf, idx=idx, s=s, T=T, t=t):
                        c = "0" if (idx == 0 and s == 0) else vr(ACC+16*T, 16)
                        a.e(f"v_mfma_f32_32x32x16_bf16 {vr(ACC+16*T,16)}, {vr(buf,4)}, {vr(XB+(t%2)*16+4*s,4)}, {c}")
                    items.append(Item(pre_read, rd, None, mm))
        elif kind == "K":
            jj = idx & 1
            for s in range(8):
                for ks in range(2):
                    first = (s == 0 and ks == 0)
                    def pre_read(n=n, first=first, tile=tile):
                        if first:
                            sync(n)
                            if tile == ("K", 0):
                                flush_until(lambda: not fillers)
                                make_ka()
                            state[tile] = adjust("K", addr_of[tile])
                    def rd(buf, tile=tile, s=s, ks=ks):
                        return a.lg(f"ds_read_b128 {vr(buf,4)}, v{KA+s} offset:{state[tile] + ks*8192}")
                    def pm(idx=idx, first=first):
                        if idx == 0 and first:
                            qconv()
                    def mm(buf, s=s, ks=ks, jj=jj):
                        d = S + 16*(2*jj+ks)
                        c = "0" if s == 0 else vr(d, 16)
                        a.e(f"v_mfma_f32_32x32x16_bf16 {vr(d,16)}, {vr(buf,4)}, {vr(QF+4*s,4)}, {c}")
                    items.append(Item(pre_read, rd, pm, mm))
        else:
            vv = idx & 1
            for u in range(4):
                for T in range(4):
                    first = (u == 0 and T == 0)
                    def pre_read(n=n, first=first, tile=tile, idx=idx):
                        if first:
                            sync(n)
                            if idx == 0:
                                for T_ in range(4):
                                    a.e(f"v_sub_u32 v{VA+T_}, v{VA+T_}, v{HI1K}")
                            state[tile] = adjust("V", addr_of[tile])
                    def rd(buf, tile=tile, u=u, T=T):
                        sb = state[tile]
                        a.lg(f"ds_read_b64_tr_b16 {vr(buf,2)}, v{VA+T} offset:{sb + u*4096}")
                        return a.lg(f"ds_read_b64_tr_b16 {vr(buf+2,2)}, v{VA+T} offset:{sb + u*4096 + 2048}")
                    def pm(idx=idx, first=first):
                        if first and idx % 2 == 1:
                            while VFILL: a.e(VFILL.pop(0))
                            a.e("s_nop 1")
                        if first and idx % 2 == 0:
                            softmax(idx // 2)
                            if OPT.get("prio") == "1": a.e("s_setprio 2")
                            a.stamp(4+idx, "s[64:67]", 222)
                            a.e("s_nop 1")
                    def mm(buf, idx=idx, u=u, T=T, vv=vv):
                        c = "0" if (idx == 0 and u == 0) else vr(ACC+16*T, 16)
                        a.e(f"v_mfma_f32_32x32x16_bf16 {vr(ACC+16*T,16)}, {vr(buf,4)}, {vr(PF+4*(4*vv+u),4)}, {c}")
                    items.append(Item(pre_read, rd, pm, mm))
    run_pipeline(a, items, AF, NBUF, NRING, fillers)
    assert not fillers

    a.c("---- epilogue")
    a.stamp(11, "s[64:67]", 222)
    a.stamp(13, "s[64:67]", 222, True)
    a.e(f"v_mov_b32 v{T0+1}, v{L}")
    a.e("s_nop 1")
    a.e(f"v_permlane32_swap_b32 v{L}, v{T0+1}")
    a.e("s_nop 1")
    a.e(f"v_add_f32 v{L}, v{L}, v{T0+1}")
    a.e(f"v_rcp_f32 v{L}, v{L}")
    a.e("s_nop 7"); a.e("s_nop 3")
    for r in range(64):
        a.e(f"v_mul_f32 v{ACC+r}, v{ACC+r}, v{L}")
    for T in range(4):
        for u in range(2):
            for r in range(4):
                a.e(f"v_cvt_pk_bf16_f32 v{S+4*(2*T+u)+r}, v{ACC+16*T+8*u+2*r}, v{ACC+16*T+8*u+2*r+1}")
    if OPT.get("omask"):
        a.e("s_mov_b32 s82, -1"); a.e("s_mov_b32 s83, -1")
        a.e("s_cmp_eq_u32 s24, 3")
        a.e("s_cselect_b32 s82, 0xffff, s82")
        a.e("s_cselect_b32 s83, 0xffff, s83")
        a.e("s_mov_b64 exec, s[82:83]")
    for T in range(4):
        for u in range(2):
            ks = 2*T + u
            if ks % 4 == 0 and ks > 0:
                a.e("s_add_u32 s28, s28, 4096")
            a.vm(f"buffer_store_dwordx4 {vr(S+4*ks,4)}, v{LANE16}, s[20:23], s28 offen offset:{(ks%4)*1024}{OST}")
    if OPT.get("omask"): a.e("s_mov_b64 exec, -1")
    if OPT.get("wend", "1") == "1":
        if OPT.get("wfirst"):
            a.e("s_cmp_ge_u32 s34, 4" if OPT.get("wfirst") == "1" else "s_cmp_lt_u32 s34, 4")
            a.e("s_cbranch_scc1 L_attn_done")
            a.e("s_and_b32 s34, s34, 3")
            a.e("s_lshl_b32 s31, s33, 2")
            a.e("s_add_u32 s31, s31, s34")
            a.e("s_lshl_b32 s31, s31, 2")
            a.e("s_add_u32 s31, s31, s24")
            a.e(f"v_lshlrev_b32 v{T0}, 3, v{LANE16}")
            a.e("s_lshl_b32 s31, s31, 14")
            a.vm(f"buffer_load_dword v{T0+1}, v{T0}, s[76:79], s31 offen")
            a.e("s_add_u32 s31, s31, 8192")
            a.vm(f"buffer_load_dword v{T0+2}, v{T0}, s[76:79], s31 offen")
        else:
            a.e("s_lshl_b32 s31, s33, 3")
            a.e("s_add_u32 s31, s31, s34")
            a.e("s_lshl_b32 s31, s31, 2")
            a.e("s_add_u32 s31, s31, s24")
            a.e(f"v_lshlrev_b32 v{T0}, 3, v{LANE16}")
            a.e("s_lshl_b32 s31, s31, 13")
            a.vm(f"buffer_load_dword v{T0+1}, v{T0}, s[76:79], s31 offen")
    a.label("L_attn_done")
    a.e("s_endpgm")
    return a.text()

def gen_oproj():
    a = Asm()
    NSB = int(OPT.get("nsb", 5))
    NS = int(OPT.get("ns2", 8)); SLOT = 16384
    ACC = 0
    AF = 32
    VA = 64
    DW = 68
    XO = 72
    BF = 80
    NBUF = int(OPT.get("nbuf2", 6)); NRING = 8
    a.label("oproj_kernel")
    a.e("s_cmp_ge_u32 s2, 256")
    a.e("s_cbranch_scc1 L_oproj_done")
    a.e("s_load_dwordx2 s[44:45], s[0:1], 32")
    a.e("s_load_dwordx2 s[46:47], s[0:1], 72")
    a.e("s_load_dwordx2 s[48:49], s[0:1], 80")
    a.e("s_load_dwordx2 s[50:51], s[0:1], 96")
    a.e("v_lshrrev_b32 v73, 6, v0")
    a.e("v_and_b32 v74, 63, v0")
    a.e("s_nop 0")
    a.e("v_readfirstlane_b32 s24, v73")
    a.e("s_and_b32 s30, s2, 7")
    a.e("s_lshr_b32 s31, s2, 3")
    a.e("s_lshr_b32 s32, s30, 2")
    a.e("s_bfe_u32 s33, s30, 0x10001")
    a.e("s_lshl_b32 s33, s33, 2")
    a.e("s_lshr_b32 s34, s31, 3")
    a.e("s_add_u32 s33, s33, s34")
    a.e("s_and_b32 s34, s30, 1")
    a.e("s_lshl_b32 s34, s34, 3")
    a.e("s_and_b32 s35, s31, 7")
    a.e("s_add_u32 s34, s34, s35")
    if OPT.get("map2"):
        a.e("s_lshr_b32 s33, s31, 2")
        a.e("s_and_b32 s34, s30, 3")
        a.e("s_lshl_b32 s34, s34, 2")
        a.e("s_and_b32 s35, s31, 3")
        a.e("s_add_u32 s34, s34, s35")
    a.e("s_lshl_b32 s25, s32, 3")
    a.e("s_add_u32 s25, s25, s33")
    a.e("s_lshl_b32 s25, s25, 2")
    a.e("s_add_u32 s25, s25, s24")
    a.e("s_lshl_b32 s25, s25, 18")
    a.e("s_lshl_b32 s26, s34, 7")
    a.e("s_mul_i32 s28, s33, 458752")
    a.e("s_lshl_b32 s35, s32, 11")
    a.e("s_add_u32 s28, s28, s35")
    a.e("s_add_u32 s28, s28, s26")
    a.e("s_lshl_b32 s29, s24, 12")
    a.e("s_add_u32 s54, s33, s34")
    a.e("s_and_b32 s54, s54, 7")
    a.e("s_lshl_b32 s54, s54, 2" if OPT.get("rot2") else "s_mov_b32 s54, 0")
    a.e("s_mov_b32 s38, -1"); a.e("s_mov_b32 s39, -1")
    a.e("s_cmp_eq_u32 s24, 3")
    a.e("s_cselect_b32 s38, 0xffff, s38")
    a.e("s_cselect_b32 s39, 0xffff, s39")
    a.e("s_waitcnt lgkmcnt(0)")
    a.e("s_cmp_eq_u32 s32, 0")
    a.e("s_cselect_b32 s8, s44, s46")
    a.e("s_cselect_b32 s9, s45, s47")
    a.e("s_mov_b32 s10, 0x800000"); a.e("s_mov_b32 s11, 0x00020000")
    a.e("s_mov_b32 s4, s50"); a.e("s_mov_b32 s5, s51")
    a.e("s_mov_b32 s6, 0x1000000"); a.e("s_mov_b32 s7, 0x00020000")
    a.e("s_mov_b32 s20, s48"); a.e("s_mov_b32 s21, s49")
    a.e("s_mov_b32 s22, 3670016"); a.e("s_mov_b32 s23, 0x00020000")
    lane = 74
    if OPT.get("stamp"):
        a.e("s_mov_b32 s64, s50"); a.e("s_mov_b32 s65, s51"); a.e("s_mov_b32 s66, 0x4000000"); a.e("s_mov_b32 s67, 0x00020000")
        a.e("s_lshl_b32 s72, s2, 2"); a.e("s_add_u32 s72, s72, s24"); a.e("s_lshl_b32 s72, s72, 8"); a.e("s_add_u32 s72, s72, 0x2100000")
        a.stamp(0, "s[64:67]", 75)
        a.stamp(12, "s[64:67]", 75, True)
    a.e(f"v_lshrrev_b32 v75, 3, v{lane}")
    a.e(f"v_and_b32 v76, 7, v{lane}")
    a.e(f"v_bfe_u32 v77, v{lane}, 4, 1")
    a.e("v_lshlrev_b32 v77, 2, v77")
    a.e("v_xor_b32 v76, v76, v77")
    a.e("s_lshl_b32 s30, s24, 16")
    a.e("v_lshlrev_b32 v75, 11, v75")
    a.e("v_add_u32 v75, s30, v75")
    a.e("v_lshl_add_u32 v75, v76, 4, v75")
    for i in range(4):
        a.e(f"v_add_u32 v{DW+i}, {i*(8*2048-1024)}, v75")
    a.e(f"v_lshrrev_b32 v75, 5, v{lane}")
    a.e(f"v_bfe_u32 v76, v{lane}, 2, 2")
    a.e(f"v_bfe_u32 v77, v{lane}, 4, 1")
    a.e(f"v_and_b32 v78, 1, v{lane}")
    a.e("v_lshl_add_u32 v77, v77, 1, v78")
    a.e(f"v_bfe_u32 v78, v{lane}, 3, 1")
    a.e("v_lshl_add_u32 v77, v78, 2, v77")
    a.e("v_lshlrev_b32 v77, 4, v77")
    a.e(f"v_bfe_u32 v78, v{lane}, 1, 1")
    a.e("v_lshl_add_u32 v77, v78, 3, v77")
    a.e("v_lshl_add_u32 v77, v76, 7, v77")
    a.e("v_lshl_add_u32 v77, v75, 10, v77")
    for T in range(2):
        a.e(f"v_xor_b32 v{VA+T}, {T<<6}, v77")
        a.e(f"v_add_u32 v{VA+2+T}, 0x10000, v{VA+T}")
    a.e(f"v_lshlrev_b32 v{XO}, 4, v{lane}")
    a.e(f"v_and_b32 v76, 31, v{lane}")
    a.e("s_lshl_b32 s30, s24, 5")
    a.e("v_add_u32 v76, s30, v76")
    a.e("v_lshlrev_b32 v75, 4, v75")
    a.e("v_lshl_add_u32 v78, v76, 12, v75")
    a.e("v_cmp_gt_u32 vcc, 112, v76")
    a.e("s_nop 1")
    a.e("s_mov_b64 s[40:41], vcc")
    NT_ = 32
    dma_id = {}; b_id = {}
    def issue_tile(t):
        slot = t % NS
        a.e(f"s_add_u32 s30, s29, {slot*SLOT}")
        a.e("s_mov_b32 m0, s30")
        a.e(f"s_add_u32 s31, s54, {t}"); a.e("s_and_b32 s31, s31, 31"); a.e("s_lshl_b32 s31, s31, 18"); a.e("s_add_u32 s31, s31, s26")
        for i in range(4):
            dma_id[t] = a.vm(f"buffer_load_dwordx4 v{DW+i}, s[8:11], s31 offen offset:{i*1024}{' nt' if OPT.get('ntw') else ''} lds")
    def issue_b(t):
        base = BF + (t % NSB) * 32
        a.e("s_mov_b64 exec, s[38:39]")
        for hf in range(2):
            a.e(f"s_add_u32 s31, s54, {t}"); a.e("s_and_b32 s31, s31, 31"); a.e("s_lshl_b32 s31, s31, 13"); a.e("s_add_u32 s31, s31, s25"); a.e(f"s_add_u32 s31, s31, {hf*4096}")
            for s in range(4):
                b_id[t] = a.vm(f"buffer_load_dwordx4 {vr(base+4*(4*hf+s),4)}, v{XO}, s[4:7], s31 offen offset:{s*1024}{' nt' if OPT.get('nto') else ''}")
        a.e("s_mov_b64 exec, -1")
    fillers = []
    TOUCH = OPT.get("touch")
    def touch(part):
        a.e("s_lshr_b32 s52, s2, 3")
        a.e("s_lshl_b32 s52, s52, 2")
        a.e("s_add_u32 s52, s52, s24")
        a.e("s_lshl_b32 s52, s52, 15")
        a.e("s_and_b32 s53, s2, 3")
        a.e("s_lshl_b32 s53, s53, 9")
        a.e("s_add_u32 s52, s52, s53")
        a.e(f"s_add_u32 s52, s52, {part*2048*2048}")
        a.e(f"v_lshrrev_b32 v75, 2, v{lane}")
        a.e(f"v_and_b32 v76, 3, v{lane}")
        a.e("v_lshlrev_b32 v76, 7, v76")
        a.e("v_lshl_add_u32 v75, v75, 11, v76")
        a.vm(f"buffer_load_dword v79, v75, s[8:11], s52 offen{' nt' if TOUCH == 'nt' else ''}")
    if TOUCH: touch(0)
    def queue_tile(t):
        slot = t % NS
        def mk(i):
            def f():
                if i == 0:
                    a.e(f"s_add_u32 s30, s29, {slot*SLOT}")
                    a.e("s_mov_b32 m0, s30")
                    a.e(f"s_add_u32 s36, s54, {t}"); a.e("s_and_b32 s36, s36, 31"); a.e("s_lshl_b32 s36, s36, 18"); a.e("s_add_u32 s36, s36, s26")
                dma_id[t] = a.vm(f"buffer_load_dwordx4 v{DW+i}, s[8:11], s36 offen offset:{i*1024}{' nt' if OPT.get('ntw') else ''} lds")
            return f
        for i in range(4): fillers.append(mk(i))
    def queue_b(t):
        base = BF + (t % NSB) * 32
        def mk(j):
            def f():
                hf, s_ = j // 4, j % 4
                if s_ == 0:
                    a.e(f"s_add_u32 s37, s54, {t}"); a.e("s_and_b32 s37, s37, 31"); a.e("s_lshl_b32 s37, s37, 13"); a.e("s_add_u32 s37, s37, s25"); a.e(f"s_add_u32 s37, s37, {hf*4096}")
                a.e("s_mov_b64 exec, s[38:39]")
                b_id[t] = a.vm(f"buffer_load_dwordx4 {vr(base+4*j,4)}, v{XO}, s[4:7], s37 offen offset:{s_*1024}{' nt' if OPT.get('nto') else ''}")
                a.e("s_mov_b64 exec, -1")
            return f
        for j in range(8): fillers.append(mk(j))
    for t in range(max(NS, NSB - 1)):
        if t < NS: issue_tile(t)
        if t < NSB - 1: issue_b(t)
    items = []
    for t in range(NT_):
        for s in range(8):
            for T in range(2):
                first = (s == 0 and T == 0)
                def pre_read(t=t, first=first):
                    if first:
                        a.c(f"---- step {t}")
                        a.wait(vm=dma_id[t])
                        a.e("s_barrier")
                        if t % 4 == 0: a.stamp(16 + t // 4, "s[64:67]", 75)
                        if TOUCH and t == 4: touch(1)
                        if t >= 2 and t + NS - 2 < NT_: queue_tile(t + NS - 2)
                def rd(buf, t=t, s=s, T=T):
                    sb = (t % NS) * SLOT
                    va = VA + T
                    if sb >= 65536: va += 2; sb -= 65536
                    assert sb < 65536
                    a.lg(f"ds_read_b64_tr_b16 {vr(buf,2)}, v{va} offset:{sb + s*2048}")
                    return a.lg(f"ds_read_b64_tr_b16 {vr(buf+2,2)}, v{va} offset:{sb + s*2048 + 512}")
                def pm(t=t, first=first):
                    if first:
                        a.wait(vm=b_id[t])
                        if t + NSB - 1 < NT_: queue_b(t + NSB - 1)
                def mm(buf, t=t, s=s, T=T):
                    bb = BF + (t % NSB) * 32
                    c = "0" if (t == 0 and s == 0) else vr(ACC+16*T, 16)
                    a.e(f"v_mfma_f32_32x32x16_bf16 {vr(ACC+16*T,16)}, {vr(buf,4)}, {vr(bb+4*s,4)}, {c}")
                items.append(Item(pre_read, rd, pm, mm))
    run_pipeline(a, items, AF, NBUF, NRING, fillers)
    a.stamp(11, "s[64:67]", 75)
    a.stamp(13, "s[64:67]", 75, True)
    a.e("s_nop 7"); a.e("s_nop 5")
    for T in range(2):
        for u in range(2):
            for r in range(4):
                a.e(f"v_cvt_pk_bf16_f32 v{BF+4*(2*T+u)+r}, v{ACC+16*T+8*u+2*r}, v{ACC+16*T+8*u+2*r+1}")
    a.e("s_and_saveexec_b64 s[42:43], s[40:41]")
    a.e("s_cbranch_execz L_oproj_done")
    for T in range(2):
        for u in range(2):
            a.vm(f"buffer_store_dwordx4 {vr(BF+4*(2*T+u),4)}, v78, s[20:23], s28 offen offset:{T*64+u*32}{FST}")
    a.label("L_oproj_done")
    a.e("s_endpgm")
    return a.text()

def kd(name, vgpr, sgpr=102):
    return f""".amdhsa_kernel {name}
  .amdhsa_next_free_vgpr {vgpr}
  .amdhsa_next_free_sgpr {sgpr}
  .amdhsa_accum_offset {(vgpr+3)//4*4}
  .amdhsa_group_segment_fixed_size 0
  .amdhsa_kernarg_size 104
  .amdhsa_user_sgpr_count 2
  .amdhsa_user_sgpr_kernarg_segment_ptr 1
  .amdhsa_system_sgpr_workgroup_id_x 1
.end_amdhsa_kernel
"""

LDS2 = 16384 * int(OPT.get("ns2", 8))
hdr = f"""; fused MHA x2: kernel 1 = Q projection + attention per (block, batch, head); kernel 2 = output projection
; @launch kernel=attn_kernel grid=(512,1,1) block=(256,1,1) lds=81920
; @launch kernel=oproj_kernel grid=(256,1,1) block=(256,1,1) lds={LDS2}
.amdgcn_target "amdgcn-amd-amdhsa--gfx950"
.text
"""
body = hdr
for name, fn in (("attn_kernel", gen_attn), ("oproj_kernel", gen_oproj)):
    body += f".globl {name}\n.p2align 8\n.type {name},@function\n" + fn()
body += '.section .rodata,"a"\n.p2align 6\n' + kd("attn_kernel", 256) + ".p2align 6\n" + kd("oproj_kernel", 80 + 32 * int(OPT.get("nsb", 5)))
open(OUT, "w").write(body)
```

```python
import sys, math, struct

OUT = sys.argv[1] if len(sys.argv) > 1 else "out.s"
OPT = dict(x.split("=") for x in sys.argv[2:])

class Asm:
    def __init__(self):
        self.lines = []
        self.vm_seq = 0
        self.lg_seq = 0
    def e(self, s): self.lines.append("    " + s)
    def label(self, s): self.lines.append(s + ":")
    def c(self, s): self.lines.append("    ; " + s)
    def vm(self, s):
        self.e(s); self.vm_seq += 1
        return self.vm_seq
    def lg(self, s):
        self.e(s); self.lg_seq += 1
        return self.lg_seq
    def wait(self, vm=None, lg=None):
        parts = []
        if vm is not None:
            n = self.vm_seq - vm; assert n >= 0
            parts.append(f"vmcnt({min(n, 63)})")
        if lg is not None:
            n = self.lg_seq - lg; assert n >= 0
            parts.append(f"lgkmcnt({min(n, 15)})")
        self.e("s_waitcnt " + " ".join(parts))
    def text(self): return "\n".join(self.lines) + "\n"
    def stamp(self, idx, srd, vtmp, real=False):
        if not OPT.get("stamp"): return
        if OPT.get("stamp") == "2" and idx not in (0, 11, 12, 13): return
        self.e("s_memrealtime s[70:71]" if real else "s_memtime s[70:71]")
        self.e("s_waitcnt lgkmcnt(0)")
        self.e(f"v_mov_b32 v{vtmp}, s70")
        self.e(f"v_mov_b32 v{vtmp+1}, s72")
        self.vm(f"buffer_store_dword v{vtmp}, v{vtmp+1}, {srd}, 0 offen offset:{idx*4}")

def vr(b, n=1):
    return f"v{b}" if n == 1 else f"v[{b}:{b+n-1}]"

SCALE = 128 ** -0.5
CEXP = SCALE * math.log2(math.e)
def f32bits(x): return "0x%08x" % struct.unpack("<I", struct.pack("<f", x))[0]
NT = " nt"

WAITG = int(OPT.get("waitg", 2))
FST = {"": "", "nt": " nt", "sc1": " sc1", "sc01": " sc0 sc1"}[OPT.get("fst", "")]
class Item:
    def __init__(self, pre_read=None, reads=None, pre_mfma=None, mfma=None):
        self.pre_read = pre_read
        self.reads = reads
        self.pre_mfma = pre_mfma
        self.mfma = mfma

VFILL = []
def run_pipeline(a, items, AF, NBUF, NRING, fillers=None, per=1):
    n = len(items)
    if fillers is None: fillers = []
    ids = {}
    def issue(j):
        it = items[j]
        if it.pre_read: it.pre_read()
        ids[j] = it.reads(AF + 4 * (j % NRING))
    for j in range(min(NBUF, n)):
        issue(j)
    for i in range(n):
        it = items[i]
        if it.pre_mfma: it.pre_mfma()
        if i % WAITG == 0:
            a.wait(lg=ids[min(i + WAITG - 1, n - 1)])
        it.mfma(AF + 4 * (i % NRING))
        for _ in range(per):
            if fillers: fillers.pop(0)()
        for _ in range(int(OPT.get("vper", 7))):
            if VFILL: a.e(VFILL.pop(0))
        if i + NBUF < n:
            issue(i + NBUF)

def gen_attn():
    a = Asm()
    ACC = 0
    S = 64
    QF = 128
    PF = 160
    AF = 192
    NXS = int(OPT.get("nxs", 3))
    XS = 64
    XB = 112
    KVP = 144
    KA = 224
    VA = 232
    DK = 236
    DV = 240
    HI1K = 241; LANE16 = 242
    M = 243; L = 244
    T0 = 245
    DW = 224
    XO = 228
    LANE = 251
    WRA = 254
    XRA = 243
    XWA = 247
    TMP = 192
    NBUF = int(OPT.get("nbuf", 6)); NRING = 7
    NWS = 3
    XL = 49152
    NPRE = int(OPT.get("npre", 3))
    OST = {"": "", "nt": " nt", "sc1": " sc1", "sc01": " sc0 sc1"}[OPT.get("ost", "")]

    a.label("attn_kernel")
    a.e("s_cmp_ge_u32 s2, 512")
    a.e("s_cbranch_scc1 L_attn_done")
    a.e("s_load_dwordx8 s[44:51], s[0:1], 0")
    a.e("s_load_dwordx8 s[52:59], s[0:1], 40")
    a.e("s_load_dwordx2 s[60:61], s[0:1], 96")
    a.e("s_load_dwordx2 s[62:63], s[0:1], 32")
    a.e("s_load_dwordx2 s[68:69], s[0:1], 72")
    lane = LANE
    a.e(f"v_lshrrev_b32 v{TMP}, 6, v0")
    a.e(f"v_and_b32 v{lane}, 63, v0")
    a.e("s_nop 0")
    a.e(f"v_readfirstlane_b32 s24, v{TMP}")
    a.e("s_and_b32 s30, s2, 7")
    a.e("s_lshr_b32 s31, s2, 3")
    if OPT.get("mix") == "1":
        a.e("s_and_b32 s32, s31, 1")
        a.e("s_lshl_b32 s33, s30, 2")
        a.e("s_bfe_u32 s34, s31, 0x20001")
        a.e("s_add_u32 s33, s33, s34")
    elif OPT.get("mix") == "2":
        a.e("s_lshr_b32 s32, s31, 5")
        a.e("s_xor_b32 s32, s32, 1")
        a.e("s_lshl_b32 s33, s30, 2")
        a.e("s_and_b32 s34, s31, 3")
        a.e("s_add_u32 s33, s33, s34")
        a.e("s_lshl_b32 s31, s31, 1")
        a.e("s_and_b32 s31, s31, 63")
    elif OPT.get("mix") == "3":
        a.e("s_lshr_b32 s32, s31, 5")
        a.e("s_lshl_b32 s33, s30, 2")
        a.e("s_and_b32 s34, s31, 3")
        a.e("s_add_u32 s33, s33, s34")
        a.e("s_lshl_b32 s31, s31, 1")
        a.e("s_and_b32 s31, s31, 63")
    else:
        a.e("s_lshr_b32 s32, s30, 2")
        a.e("s_and_b32 s33, s30, 3")
        a.e("s_lshl_b32 s33, s33, 3")
        a.e("s_and_b32 s34, s31, 7")
        a.e("s_add_u32 s33, s33, s34")
    a.e("s_lshr_b32 s34, s31, 3")
    a.e("s_mul_i32 s25, s34, 229376")
    a.e("s_lshl_b32 s26, s33, 8")
    a.e("s_lshl_b32 s27, s34, 5")
    a.e("s_add_u32 s27, s27, s33")
    a.e("s_lshl_b32 s27, s27, 17")
    a.e("s_lshl_b32 s28, s32, 3")
    a.e("s_add_u32 s28, s28, s34")
    a.e("s_lshl_b32 s28, s28, 2")
    a.e("s_add_u32 s28, s28, s24")
    a.e("s_lshl_b32 s28, s28, 18")
    a.e("s_lshl_b32 s35, s33, 13")
    a.e("s_add_u32 s28, s28, s35")
    a.e("s_lshl_b32 s29, s24, 12")
    a.e("s_lshl_b32 s36, s24, 11")
    a.e(f"s_mov_b32 s42, {f32bits(CEXP)}")
    a.e("s_add_u32 s43, s33, s34")
    a.e("s_and_b32 s43, s43, 7")
    a.e("s_lshl_b32 s43, s43, 1" if OPT.get("rot") else "s_mov_b32 s43, 0")
    a.e("s_mov_b32 s38, -1"); a.e("s_mov_b32 s39, -1")
    a.e("s_cmp_eq_u32 s24, 3")
    a.e("s_cselect_b32 s38, 0, s38")
    a.e("s_cselect_b32 s39, 0, s39")
    a.e("s_waitcnt lgkmcnt(0)")
    a.e("s_cmp_eq_u32 s32, 0")
    for d, (sa, sb) in ((4, (44, 52)), (12, (46, 54)), (16, (48, 56)), (8, (50, 58)), (76, (62, 68))):
        a.e(f"s_cselect_b32 s{d}, s{sa}, s{sb}")
        a.e(f"s_cselect_b32 s{d+1}, s{sa+1}, s{sb+1}")
    a.e("s_mov_b32 s6, 1835008"); a.e("s_mov_b32 s7, 0x00020000")
    a.e("s_mov_b32 s10, 0x800000"); a.e("s_mov_b32 s11, 0x00020000")
    a.e("s_mov_b32 s14, 0x2000000"); a.e("s_mov_b32 s15, 0x00020000")
    a.e("s_mov_b32 s18, 0x2000000"); a.e("s_mov_b32 s19, 0x00020000")
    a.e("s_mov_b32 s20, s60"); a.e("s_mov_b32 s21, s61")
    a.e("s_mov_b32 s22, 0x1000000"); a.e("s_mov_b32 s23, 0x00020000")
    a.e("s_mov_b32 s78, 0x800000"); a.e("s_mov_b32 s79, 0x00020000")
    if OPT.get("stamp"):
        a.e("s_mov_b32 s64, s60"); a.e("s_mov_b32 s65, s61"); a.e("s_mov_b32 s66, 0x4000000"); a.e("s_mov_b32 s67, 0x00020000")
        a.e("s_lshl_b32 s72, s2, 2"); a.e("s_add_u32 s72, s72, s24"); a.e("s_lshl_b32 s72, s72, 8"); a.e("s_add_u32 s72, s72, 0x2000000")
        a.stamp(0, "s[64:67]", 222)
        a.stamp(12, "s[64:67]", 222, True)
    t0, t1, t2, t3, t4 = TMP, TMP+1, TMP+2, TMP+3, TMP+4
    a.e(f"v_lshrrev_b32 v{t0}, 4, v{lane}")
    a.e(f"v_and_b32 v{t1}, 15, v{lane}")
    a.e(f"v_xor_b32 v{t2}, v{t0}, v{t1}")
    a.e(f"v_lshlrev_b32 v{t3}, 8, v{t0}")
    a.e(f"v_add_u32 v{t3}, s29, v{t3}")
    for i in range(4):
        a.e(f"v_xor_b32 v{t4}, {4*i}, v{t2}")
        a.e(f"v_lshl_add_u32 v{DK+i}, v{t4}, 4, v{t3}")
    a.e(f"v_lshlrev_b32 v{t4}, 2, v{t0}")
    a.e(f"v_xor_b32 v{t4}, v{t4}, v{t1}")
    a.e(f"v_lshl_add_u32 v{DV}, v{t4}, 4, v{t3}")
    a.e("s_lshl_b32 s30, s24, 17")
    a.e(f"v_lshlrev_b32 v{t3}, 13, v{t0}")
    a.e(f"v_add_u32 v{t3}, s30, v{t3}")
    a.e(f"v_lshl_add_u32 v{t3}, v{t4}, 4, v{t3}")
    for i in range(4):
        a.e(f"v_add_u32 v{DW+i}, {i*(4*8192-1024)}, v{t3}")
    a.e(f"v_and_b32 v{t0}, 31, v{lane}")
    a.e(f"v_lshrrev_b32 v{t1}, 5, v{lane}")
    a.e(f"v_bfe_u32 v{t2}, v{t0}, 1, 3")
    a.e(f"v_xor_b32 v{t2}, v{t2}, v{t1}")
    a.e(f"v_lshlrev_b32 v{t2}, 4, v{t2}")
    a.e(f"v_lshl_add_u32 v{t2}, v{t0}, 7, v{t2}")
    a.e(f"s_add_u32 s30, s29, {XL}")
    a.e(f"v_add_u32 v{t2}, s30, v{t2}")
    for s_ in range(4):
        a.e(f"v_xor_b32 v{XRA+s_}, {s_<<5}, v{t2}")
    a.e(f"v_lshrrev_b32 v{t2}, 3, v{lane}")
    a.e(f"v_and_b32 v{t3}, 7, v{lane}")
    a.e("s_lshl_b32 s31, s24, 16")
    a.e(f"v_lshlrev_b32 v{t2}, 11, v{t2}")
    a.e(f"v_add_u32 v{t2}, s31, v{t2}")
    a.e(f"v_lshrrev_b32 v{t4}, 4, v{lane}")
    a.e(f"v_xor_b32 v{t3}, v{t3}, v{t4}")
    for i in range(4):
        a.e(f"v_xor_b32 v{t4}, {(4*i)&7}, v{t3}")
        a.e(f"v_lshl_add_u32 v{t4}, v{t4}, 4, v{t2}")
        a.e(f"v_add_u32 v{XO+i}, {i*(16384-1024)}, v{t4}")
    a.e(f"v_bfe_u32 v{t2}, v{lane}, 2, 2")
    a.e(f"v_bfe_u32 v{t3}, v{lane}, 4, 1")
    a.e(f"v_and_b32 v{t4}, 1, v{lane}")
    a.e(f"v_lshl_add_u32 v{t3}, v{t3}, 1, v{t4}")
    a.e(f"v_lshl_add_u32 v{t3}, v{t2}, 2, v{t3}")
    a.e(f"v_lshlrev_b32 v{t3}, 4, v{t3}")
    a.e(f"v_bfe_u32 v{t4}, v{lane}, 1, 1")
    a.e(f"v_lshl_add_u32 v{t3}, v{t4}, 3, v{t3}")
    a.e(f"v_lshl_add_u32 v{t3}, v{t2}, 8, v{t3}")
    a.e(f"v_lshl_add_u32 v{t3}, v{t1}, 11, v{t3}")
    for T in range(4):
        a.e(f"v_xor_b32 v{VA+T}, {T<<6}, v{t3}")
    a.e(f"v_lshlrev_b32 v{HI1K}, 10, v{t1}")
    a.e(f"v_lshlrev_b32 v{LANE16}, 4, v{lane}")
    a.e(f"v_add_u32 v{WRA}, s29, v{LANE16}")

    def make_ka():
        u0, u1, u2 = 252, 253, 255
        a.e(f"v_and_b32 v{u0}, 31, v{lane}")
        a.e(f"v_lshrrev_b32 v{u1}, 5, v{lane}")
        a.e(f"v_and_b32 v{u2}, 15, v{u0}")
        a.e(f"v_xor_b32 v{u2}, v{u2}, v{u1}")
        a.e(f"v_lshlrev_b32 v{u2}, 4, v{u2}")
        a.e(f"v_lshl_add_u32 v{u2}, v{u0}, 8, v{u2}")
        for s_ in range(8):
            a.e(f"v_xor_b32 v{KA+s_}, {s_<<5}, v{u2}")
    addr_of = {}; dma_id = {}; x_id = {}; state = {}
    fillers = []
    def now_or_later(fs, later):
        for f in fs:
            if later: fillers.append(f)
            else: f()
    def flush_until(cond):
        while not cond():
            fillers.pop(0)()
    NTQ = " nt" if OPT.get("ntq") else ""
    def issue_tile(tile, addr, later=False):
        kind, idx = tile
        addr_of[tile] = addr
        fs = []
        for p in range(2):
            def f(p=p):
                a.e(f"s_add_u32 m0, s29, {addr}")
                if kind == "W" and OPT.get("rot"):
                    a.e(f"s_add_u32 s31, s43, {idx}")
                    a.e("s_and_b32 s31, s31, 15")
                    a.e("s_lshl_b32 s31, s31, 19")
                    a.e("s_add_u32 s31, s31, s26")
                elif kind == "W":
                    a.e(f"s_add_u32 s31, s26, {idx*64*8192}")
                else:
                    a.e(f"s_add_u32 s31, s27, {idx*16384}")
                for i in (2*p, 2*p+1):
                    if kind == "W":
                        r = a.vm(f"buffer_load_dwordx4 v{DW+i}, s[8:11], s31 offen offset:{i*1024}{NTQ} lds")
                    elif kind == "K":
                        r = a.vm(f"buffer_load_dwordx4 v{DK+i}, s[12:15], s31 offen offset:{i*1024}{NT} lds")
                    else:
                        r = a.vm(f"buffer_load_dwordx4 v{DV}, s[16:19], s31 offen offset:{i*1024}{NT} lds")
                if p == 1: dma_id[tile] = r
            fs.append(f)
        now_or_later(fs, later)
    pre_id = {}
    def issue_pre(tile, slot):
        kind, idx = tile
        a.e(f"s_add_u32 s31, s27, {idx*16384}")
        for i in range(4):
            d = vr(KVP + 16*slot + 4*i, 4)
            if kind == "K":
                pre_id[tile] = a.vm(f"buffer_load_dwordx4 {d}, v{DK+i}, s[12:15], s31 offen offset:{i*1024}{NT}")
            else:
                pre_id[tile] = a.vm(f"buffer_load_dwordx4 {d}, v{DV}, s[16:19], s31 offen offset:{i*1024}{NT}")
    def spill_pre(tile, slot, addr):
        addr_of[tile] = addr
        a.wait(vm=pre_id[tile])
        for i in range(4):
            state["prew", tile] = a.lg(f"ds_write_b128 v{WRA}, {vr(KVP + 16*slot + 4*i, 4)} offset:{addr + i*1024}")
    def issue_x(t, later=False):
        fs = []
        for p in range(2):
            def f(p=p):
                if p == 0 and ("xr", t - 2) in state:
                    a.wait(lg=state["xr", t - 2])
                a.e(f"s_add_u32 m0, s29, {XL + (t%2)*16384}")
                if OPT.get("rot"):
                    a.e(f"s_add_u32 s37, s43, {t}")
                    a.e("s_and_b32 s37, s37, 15")
                    a.e("s_lshl_b32 s37, s37, 7")
                    a.e("s_add_u32 s37, s37, s25")
                else:
                    a.e(f"s_add_u32 s37, s25, {t*128}")
                if p == 1: a.e("s_mov_b64 exec, s[38:39]")
                for i in (2*p, 2*p+1):
                    r = a.vm(f"buffer_load_dwordx4 v{XO+i}, s[4:7], s37 offen offset:{i*1024}{NTQ} lds")
                if p == 1:
                    a.e("s_mov_b64 exec, -1")
                    x_id[t] = r
            fs.append(f)
        now_or_later(fs, later)

    cons = [("W", t) for t in range(16)]
    for g in range(4):
        cons += [("K", 2*g), ("K", 2*g+1), ("V", 2*g), ("V", 2*g+1)]
    kv_all = cons[16:]
    pre_tiles = kv_all[:NPRE]
    kvq = kv_all[NPRE:]
    if OPT.get("prio") in ("1", "2"): a.e("s_setprio 2")
    issue_x(0)
    issue_tile(("W", 0), 0)
    issue_x(1)
    issue_tile(("W", 1), 16384)
    issue_tile(("W", 2), 32768)
    PRE_AT = int(OPT.get("preat", -1))
    if PRE_AT < 0:
        for i, tl in enumerate(pre_tiles): issue_pre(tl, i)
    pre_left = list(enumerate(pre_tiles))
    def fill_region(addr, dma_only=False):
        if pre_left and not dma_only:
            i, tl = pre_left.pop(0)
            spill_pre(tl, i, addr)
        elif kvq:
            issue_tile(kvq.pop(0), addr, True)
    def sync(n):
        tile = cons[n]
        drain = (n <= 16) or bool(OPT.get("kvdrain"))
        if tile in pre_tiles:
            if drain: a.e("s_waitcnt lgkmcnt(0)")
            else: a.wait(lg=state["prew", tile])
        else:
            flush_until(lambda: tile in dma_id)
            w = dma_id[tile]
            if tile[0] == "W":
                flush_until(lambda: n in x_id)
                w = max(w, x_id[n])
            a.wait(vm=w, lg=a.lg_seq if drain else None)
        a.e("s_barrier")
        if n == 0: a.stamp(1, "s[64:67]", 222)
        if n in (2, 4, 6, 8, 10, 12, 14): a.stamp(16 + n // 2, "s[64:67]", 222)
        if PRE_AT >= 0 and PRE_AT <= n < PRE_AT + 2 * NPRE and (n - PRE_AT) % 2 == 0:
            i = (n - PRE_AT) // 2
            fillers.append(lambda i=i: issue_pre(pre_tiles[i], i))
        if 1 <= n <= 13:
            issue_tile(("W", n + 2), addr_of[cons[n-1]], True)
        elif 14 <= n <= 16 or (n >= 17 and OPT.get("kvdrain")):
            fill_region(addr_of[cons[n-1]])
        elif n >= 18:
            fill_region(addr_of[cons[n-2]])
        if n == 15: fill_region(XL, True)
        if n == 16: fill_region(XL + 16384, True)

    cur_shift = {"K": 0, "V": 0}
    def adjust(kind, addr):
        regs = range(KA, KA+8) if kind == "K" else range(VA, VA+4)
        want = 65536 if addr >= 65536 else 0
        if cur_shift[kind] != want:
            d = want - cur_shift[kind]
            for r in regs:
                a.e(f"v_add_u32 v{r}, {d & 0xffffffff:#x}, v{r}")
            cur_shift[kind] = want
        return addr - want

    def softmax(g):
        a.stamp(3+2*g, "s[64:67]", 222)
        if OPT.get("prio") == "1": a.e("s_setprio 0")
        a.e("s_nop 7"); a.e("s_nop 5")
        for ch in range(4):
            b = S + 16*ch
            a.e(f"v_max3_f32 v{T0+ch}, v{b}, v{b+1}, v{b+2}")
        for k in range(6):
            for ch in range(4):
                b = S + 16*ch
                a.e(f"v_max3_f32 v{T0+ch}, v{T0+ch}, v{b+3+2*k}, v{b+4+2*k}")
        for ch in range(4):
            a.e(f"v_max_f32 v{T0+ch}, v{T0+ch}, v{S+16*ch+15}")
        a.e(f"v_max3_f32 v{T0}, v{T0}, v{T0+1}, v{T0+2}")
        a.e(f"v_max_f32 v{T0}, v{T0}, v{T0+3}")
        a.e(f"v_mov_b32 v{T0+1}, v{T0}")
        a.e("s_nop 1")
        a.e(f"v_permlane32_swap_b32 v{T0}, v{T0+1}")
        a.e("s_nop 1")
        if g == 0:
            a.e(f"v_max_f32 v{M}, v{T0}, v{T0+1}")
        else:
            a.e(f"v_max3_f32 v{T0}, v{T0}, v{T0+1}, v{M}")
            a.e(f"v_sub_f32 v{T0+1}, v{M}, v{T0}")
            a.e(f"v_mul_f32 v{T0+1}, s42, v{T0+1}")
            a.e(f"v_exp_f32 v{T0+1}, v{T0+1}")
            a.e(f"v_mov_b32 v{M}, v{T0}")
            a.e(f"v_mul_f32 v{L}, v{L}, v{T0+1}")
            for r in range(64):
                a.e(f"v_mul_f32 v{ACC+r}, v{ACC+r}, v{T0+1}")
                if r % 16 == 15 and fillers: fillers.pop(0)()
        a.e(f"v_mul_f32 v{T0}, s42, v{M}")
        SPLIT = int(OPT.get("split", 4))
        PK = OPT.get("pk")
        for blk in range(8):
            b = S + 8*blk
            out = []
            if PK:
                for r in range(0, 8, 2):
                    out.append(f"v_pk_fma_f32 {vr(b+r,2)}, {vr(b+r,2)}, s[42:43], {vr(PKT,2)} op_sel_hi:[1,1,0] neg_lo:[0,0,1] neg_hi:[0,0,1]")
            else:
                for r in range(8):
                    out.append(f"v_fma_f32 v{b+r}, v{b+r}, s42, -v{T0}")
            for r in range(8):
                out.append(f"v_exp_f32 v{b+r}, v{b+r}")
            if blk == 0:
                for r in range(4):
                    out.append(f"v_add_f32 v{T0+2+r}, v{b+r}, v{b+4+r}")
            else:
                for r in range(8):
                    out.append(f"v_add_f32 v{T0+2+(r&3)}, v{T0+2+(r&3)}, v{b+r}")
            for r in range(4):
                out.append(f"v_cvt_pk_bf16_f32 v{PF+4*blk+r}, v{b+2*r}, v{b+2*r+1}")
            if blk == 7:
                out.append(f"v_add_f32 v{T0+2}, v{T0+2}, v{T0+3}")
                out.append(f"v_add_f32 v{T0+4}, v{T0+4}, v{T0+5}")
                out.append(f"v_add_f32 v{T0+2}, v{T0+2}, v{T0+4}")
                out.append(f"v_mov_b32 v{L}, v{T0+2}" if g == 0 else f"v_add_f32 v{L}, v{L}, v{T0+2}")
            if blk < SPLIT:
                for k, ins in enumerate(out):
                    a.e(ins)
                    if k == 15 and fillers: fillers.pop(0)()
            else:
                VFILL.extend(out)

    def qconv():
        a.stamp(2, "s[64:67]", 222)
        if OPT.get("prio") == "2": a.e("s_setprio 0")
        a.e("s_nop 7"); a.e("s_nop 5")
        for T in range(4):
            for u in range(2):
                for r in range(4):
                    a.e(f"v_cvt_pk_bf16_f32 v{QF+4*(2*T+u)+r}, v{ACC+16*T+8*u+2*r}, v{ACC+16*T+8*u+2*r+1}")
        a.e("s_nop 1")

    items = []
    for n, tile in enumerate(cons):
        kind, idx = tile
        if kind == "W":
            t = idx
            for s in range(4):
                for T in range(4):
                    first = (s == 0 and T == 0)
                    def pre_read(n=n, first=first, t=t):
                        if first:
                            sync(n)
                    def rd(buf, tile=tile, s=s, T=T, t=t):
                        sb = addr_of[tile]
                        if s == 0:
                            state["xr", t] = a.lg(f"ds_read_b128 {vr(XB+(t%2)*16+4*T,4)}, v{XRA+T} offset:{(t%2)*16384}")
                        if s == 2 and T == 0 and t + 2 < 16: issue_x(t + 2, True)
                        a.lg(f"ds_read_b64_tr_b16 {vr(buf,2)}, v{VA+T} offset:{sb + s*4096}")
                        return a.lg(f"ds_read_b64_tr_b16 {vr(buf+2,2)}, v{VA+T} offset:{sb + s*4096 + 1024}")
                    def mm(buf, idx=idx, s=s, T=T, t=t):
                        c = "0" if (idx == 0 and s == 0) else vr(ACC+16*T, 16)
                        a.e(f"v_mfma_f32_32x32x16_bf16 {vr(ACC+16*T,16)}, {vr(buf,4)}, {vr(XB+(t%2)*16+4*s,4)}, {c}")
                    items.append(Item(pre_read, rd, None, mm))
        elif kind == "K":
            jj = idx & 1
            for s in range(8):
                for ks in range(2):
                    first = (s == 0 and ks == 0)
                    def pre_read(n=n, first=first, tile=tile):
                        if first:
                            sync(n)
                            if tile == ("K", 0):
                                flush_until(lambda: not fillers)
                                make_ka()
                            state[tile] = adjust("K", addr_of[tile])
                    def rd(buf, tile=tile, s=s, ks=ks):
                        return a.lg(f"ds_read_b128 {vr(buf,4)}, v{KA+s} offset:{state[tile] + ks*8192}")
                    def pm(idx=idx, first=first):
                        if idx == 0 and first:
                            qconv()
                    def mm(buf, s=s, ks=ks, jj=jj):
                        d = S + 16*(2*jj+ks)
                        c = "0" if s == 0 else vr(d, 16)
                        a.e(f"v_mfma_f32_32x32x16_bf16 {vr(d,16)}, {vr(buf,4)}, {vr(QF+4*s,4)}, {c}")
                    items.append(Item(pre_read, rd, pm, mm))
        else:
            vv = idx & 1
            for u in range(4):
                for T in range(4):
                    first = (u == 0 and T == 0)
                    def pre_read(n=n, first=first, tile=tile, idx=idx):
                        if first:
                            sync(n)
                            if idx == 0:
                                for T_ in range(4):
                                    a.e(f"v_sub_u32 v{VA+T_}, v{VA+T_}, v{HI1K}")
                            state[tile] = adjust("V", addr_of[tile])
                    def rd(buf, tile=tile, u=u, T=T):
                        sb = state[tile]
                        a.lg(f"ds_read_b64_tr_b16 {vr(buf,2)}, v{VA+T} offset:{sb + u*4096}")
                        return a.lg(f"ds_read_b64_tr_b16 {vr(buf+2,2)}, v{VA+T} offset:{sb + u*4096 + 2048}")
                    def pm(idx=idx, first=first):
                        if first and idx % 2 == 1:
                            while VFILL: a.e(VFILL.pop(0))
                            a.e("s_nop 1")
                        if first and idx % 2 == 0:
                            softmax(idx // 2)
                            if OPT.get("prio") == "1": a.e("s_setprio 2")
                            a.stamp(4+idx, "s[64:67]", 222)
                            a.e("s_nop 1")
                    def mm(buf, idx=idx, u=u, T=T, vv=vv):
                        c = "0" if (idx == 0 and u == 0) else vr(ACC+16*T, 16)
                        a.e(f"v_mfma_f32_32x32x16_bf16 {vr(ACC+16*T,16)}, {vr(buf,4)}, {vr(PF+4*(4*vv+u),4)}, {c}")
                    items.append(Item(pre_read, rd, pm, mm))
    run_pipeline(a, items, AF, NBUF, NRING, fillers)
    assert not fillers

    a.c("---- epilogue")
    a.stamp(11, "s[64:67]", 222)
    a.stamp(13, "s[64:67]", 222, True)
    a.e(f"v_mov_b32 v{T0+1}, v{L}")
    a.e("s_nop 1")
    a.e(f"v_permlane32_swap_b32 v{L}, v{T0+1}")
    a.e("s_nop 1")
    a.e(f"v_add_f32 v{L}, v{L}, v{T0+1}")
    a.e(f"v_rcp_f32 v{L}, v{L}")
    a.e("s_nop 7"); a.e("s_nop 3")
    for r in range(64):
        a.e(f"v_mul_f32 v{ACC+r}, v{ACC+r}, v{L}")
    for T in range(4):
        for u in range(2):
            for r in range(4):
                a.e(f"v_cvt_pk_bf16_f32 v{S+4*(2*T+u)+r}, v{ACC+16*T+8*u+2*r}, v{ACC+16*T+8*u+2*r+1}")
    if OPT.get("omask"):
        a.e("s_mov_b32 s82, -1"); a.e("s_mov_b32 s83, -1")
        a.e("s_cmp_eq_u32 s24, 3")
        a.e("s_cselect_b32 s82, 0xffff, s82")
        a.e("s_cselect_b32 s83, 0xffff, s83")
        a.e("s_mov_b64 exec, s[82:83]")
    for T in range(4):
        for u in range(2):
            ks = 2*T + u
            if ks % 4 == 0 and ks > 0:
                a.e("s_add_u32 s28, s28, 4096")
            a.vm(f"buffer_store_dwordx4 {vr(S+4*ks,4)}, v{LANE16}, s[20:23], s28 offen offset:{(ks%4)*1024}{OST}")
    if OPT.get("omask"): a.e("s_mov_b64 exec, -1")
    if OPT.get("wend", "1") == "1":
        if OPT.get("wfirst"):
            a.e("s_cmp_ge_u32 s34, 4" if OPT.get("wfirst") == "1" else "s_cmp_lt_u32 s34, 4")
            a.e("s_cbranch_scc1 L_attn_done")
            a.e("s_and_b32 s34, s34, 3")
            a.e("s_lshl_b32 s31, s33, 2")
            a.e("s_add_u32 s31, s31, s34")
            a.e("s_lshl_b32 s31, s31, 2")
            a.e("s_add_u32 s31, s31, s24")
            a.e(f"v_lshlrev_b32 v{T0}, 3, v{LANE16}")
            a.e("s_lshl_b32 s31, s31, 14")
            a.vm(f"buffer_load_dword v{T0+1}, v{T0}, s[76:79], s31 offen")
            a.e("s_add_u32 s31, s31, 8192")
            a.vm(f"buffer_load_dword v{T0+2}, v{T0}, s[76:79], s31 offen")
        else:
            a.e("s_lshl_b32 s31, s33, 3")
            a.e("s_add_u32 s31, s31, s34")
            a.e("s_lshl_b32 s31, s31, 2")
            a.e("s_add_u32 s31, s31, s24")
            a.e(f"v_lshlrev_b32 v{T0}, 3, v{LANE16}")
            a.e("s_lshl_b32 s31, s31, 13")
            a.vm(f"buffer_load_dword v{T0+1}, v{T0}, s[76:79], s31 offen")
    a.label("L_attn_done")
    a.e("s_endpgm")
    return a.text()

def gen_oproj():
    a = Asm()
    NSB = int(OPT.get("nsb", 5))
    NS = int(OPT.get("ns2", 8)); SLOT = 16384
    ACC = 0
    AF = 32
    VA = 64
    DW = 68
    XO = 72
    BF = 80
    NBUF = int(OPT.get("nbuf2", 6)); NRING = 8
    a.label("oproj_kernel")
    a.e("s_cmp_ge_u32 s2, 256")
    a.e("s_cbranch_scc1 L_oproj_done")
    a.e("s_load_dwordx2 s[44:45], s[0:1], 32")
    a.e("s_load_dwordx2 s[46:47], s[0:1], 72")
    a.e("s_load_dwordx2 s[48:49], s[0:1], 80")
    a.e("s_load_dwordx2 s[50:51], s[0:1], 96")
    a.e("v_lshrrev_b32 v73, 6, v0")
    a.e("v_and_b32 v74, 63, v0")
    a.e("s_nop 0")
    a.e("v_readfirstlane_b32 s24, v73")
    a.e("s_and_b32 s30, s2, 7")
    a.e("s_lshr_b32 s31, s2, 3")
    a.e("s_lshr_b32 s32, s30, 2")
    a.e("s_bfe_u32 s33, s30, 0x10001")
    a.e("s_lshl_b32 s33, s33, 2")
    a.e("s_lshr_b32 s34, s31, 3")
    a.e("s_add_u32 s33, s33, s34")
    a.e("s_and_b32 s34, s30, 1")
    a.e("s_lshl_b32 s34, s34, 3")
    a.e("s_and_b32 s35, s31, 7")
    a.e("s_add_u32 s34, s34, s35")
    if OPT.get("map2"):
        a.e("s_lshr_b32 s33, s31, 2")
        a.e("s_and_b32 s34, s30, 3")
        a.e("s_lshl_b32 s34, s34, 2")
        a.e("s_and_b32 s35, s31, 3")
        a.e("s_add_u32 s34, s34, s35")
    a.e("s_lshl_b32 s25, s32, 3")
    a.e("s_add_u32 s25, s25, s33")
    a.e("s_lshl_b32 s25, s25, 2")
    a.e("s_add_u32 s25, s25, s24")
    a.e("s_lshl_b32 s25, s25, 18")
    a.e("s_lshl_b32 s26, s34, 7")
    a.e("s_mul_i32 s28, s33, 458752")
    a.e("s_lshl_b32 s35, s32, 11")
    a.e("s_add_u32 s28, s28, s35")
    a.e("s_add_u32 s28, s28, s26")
    a.e("s_lshl_b32 s29, s24, 12")
    a.e("s_add_u32 s54, s33, s34")
    a.e("s_and_b32 s54, s54, 7")
    a.e("s_lshl_b32 s54, s54, 2" if OPT.get("rot2") else "s_mov_b32 s54, 0")
    a.e("s_mov_b32 s38, -1"); a.e("s_mov_b32 s39, -1")
    a.e("s_cmp_eq_u32 s24, 3")
    a.e("s_cselect_b32 s38, 0xffff, s38")
    a.e("s_cselect_b32 s39, 0xffff, s39")
    a.e("s_waitcnt lgkmcnt(0)")
    a.e("s_cmp_eq_u32 s32, 0")
    a.e("s_cselect_b32 s8, s44, s46")
    a.e("s_cselect_b32 s9, s45, s47")
    a.e("s_mov_b32 s10, 0x800000"); a.e("s_mov_b32 s11, 0x00020000")
    a.e("s_mov_b32 s4, s50"); a.e("s_mov_b32 s5, s51")
    a.e("s_mov_b32 s6, 0x1000000"); a.e("s_mov_b32 s7, 0x00020000")
    a.e("s_mov_b32 s20, s48"); a.e("s_mov_b32 s21, s49")
    a.e("s_mov_b32 s22, 3670016"); a.e("s_mov_b32 s23, 0x00020000")
    lane = 74
    if OPT.get("stamp"):
        a.e("s_mov_b32 s64, s50"); a.e("s_mov_b32 s65, s51"); a.e("s_mov_b32 s66, 0x4000000"); a.e("s_mov_b32 s67, 0x00020000")
        a.e("s_lshl_b32 s72, s2, 2"); a.e("s_add_u32 s72, s72, s24"); a.e("s_lshl_b32 s72, s72, 8"); a.e("s_add_u32 s72, s72, 0x2100000")
        a.stamp(0, "s[64:67]", 75)
        a.stamp(12, "s[64:67]", 75, True)
    a.e(f"v_lshrrev_b32 v75, 3, v{lane}")
    a.e(f"v_and_b32 v76, 7, v{lane}")
    a.e(f"v_bfe_u32 v77, v{lane}, 4, 1")
    a.e("v_lshlrev_b32 v77, 2, v77")
    a.e("v_xor_b32 v76, v76, v77")
    a.e("s_lshl_b32 s30, s24, 16")
    a.e("v_lshlrev_b32 v75, 11, v75")
    a.e("v_add_u32 v75, s30, v75")
    a.e("v_lshl_add_u32 v75, v76, 4, v75")
    for i in range(4):
        a.e(f"v_add_u32 v{DW+i}, {i*(8*2048-1024)}, v75")
    a.e(f"v_lshrrev_b32 v75, 5, v{lane}")
    a.e(f"v_bfe_u32 v76, v{lane}, 2, 2")
    a.e(f"v_bfe_u32 v77, v{lane}, 4, 1")
    a.e(f"v_and_b32 v78, 1, v{lane}")
    a.e("v_lshl_add_u32 v77, v77, 1, v78")
    a.e(f"v_bfe_u32 v78, v{lane}, 3, 1")
    a.e("v_lshl_add_u32 v77, v78, 2, v77")
    a.e("v_lshlrev_b32 v77, 4, v77")
    a.e(f"v_bfe_u32 v78, v{lane}, 1, 1")
    a.e("v_lshl_add_u32 v77, v78, 3, v77")
    a.e("v_lshl_add_u32 v77, v76, 7, v77")
    a.e("v_lshl_add_u32 v77, v75, 10, v77")
    for T in range(2):
        a.e(f"v_xor_b32 v{VA+T}, {T<<6}, v77")
        a.e(f"v_add_u32 v{VA+2+T}, 0x10000, v{VA+T}")
    a.e(f"v_lshlrev_b32 v{XO}, 4, v{lane}")
    a.e(f"v_and_b32 v76, 31, v{lane}")
    a.e("s_lshl_b32 s30, s24, 5")
    a.e("v_add_u32 v76, s30, v76")
    a.e("v_lshlrev_b32 v75, 4, v75")
    a.e("v_lshl_add_u32 v78, v76, 12, v75")
    a.e("v_cmp_gt_u32 vcc, 112, v76")
    a.e("s_nop 1")
    a.e("s_mov_b64 s[40:41], vcc")
    NT_ = 32
    dma_id = {}; b_id = {}
    def issue_tile(t):
        slot = t % NS
        a.e(f"s_add_u32 s30, s29, {slot*SLOT}")
        a.e("s_mov_b32 m0, s30")
        a.e(f"s_add_u32 s31, s54, {t}"); a.e("s_and_b32 s31, s31, 31"); a.e("s_lshl_b32 s31, s31, 18"); a.e("s_add_u32 s31, s31, s26")
        for i in range(4):
            dma_id[t] = a.vm(f"buffer_load_dwordx4 v{DW+i}, s[8:11], s31 offen offset:{i*1024}{' nt' if OPT.get('ntw') else ''} lds")
    def issue_b(t):
        base = BF + (t % NSB) * 32
        a.e("s_mov_b64 exec, s[38:39]")
        for hf in range(2):
            a.e(f"s_add_u32 s31, s54, {t}"); a.e("s_and_b32 s31, s31, 31"); a.e("s_lshl_b32 s31, s31, 13"); a.e("s_add_u32 s31, s31, s25"); a.e(f"s_add_u32 s31, s31, {hf*4096}")
            for s in range(4):
                b_id[t] = a.vm(f"buffer_load_dwordx4 {vr(base+4*(4*hf+s),4)}, v{XO}, s[4:7], s31 offen offset:{s*1024}{' nt' if OPT.get('nto') else ''}")
        a.e("s_mov_b64 exec, -1")
    fillers = []
    TOUCH = OPT.get("touch")
    def touch(part):
        a.e("s_lshr_b32 s52, s2, 3")
        a.e("s_lshl_b32 s52, s52, 2")
        a.e("s_add_u32 s52, s52, s24")
        a.e("s_lshl_b32 s52, s52, 15")
        a.e("s_and_b32 s53, s2, 3")
        a.e("s_lshl_b32 s53, s53, 9")
        a.e("s_add_u32 s52, s52, s53")
        a.e(f"s_add_u32 s52, s52, {part*2048*2048}")
        a.e(f"v_lshrrev_b32 v75, 2, v{lane}")
        a.e(f"v_and_b32 v76, 3, v{lane}")
        a.e("v_lshlrev_b32 v76, 7, v76")
        a.e("v_lshl_add_u32 v75, v75, 11, v76")
        a.vm(f"buffer_load_dword v79, v75, s[8:11], s52 offen{' nt' if TOUCH == 'nt' else ''}")
    if TOUCH: touch(0)
    def queue_tile(t):
        slot = t % NS
        def mk(i):
            def f():
                if i == 0:
                    a.e(f"s_add_u32 s30, s29, {slot*SLOT}")
                    a.e("s_mov_b32 m0, s30")
                    a.e(f"s_add_u32 s36, s54, {t}"); a.e("s_and_b32 s36, s36, 31"); a.e("s_lshl_b32 s36, s36, 18"); a.e("s_add_u32 s36, s36, s26")
                dma_id[t] = a.vm(f"buffer_load_dwordx4 v{DW+i}, s[8:11], s36 offen offset:{i*1024}{' nt' if OPT.get('ntw') else ''} lds")
            return f
        for i in range(4): fillers.append(mk(i))
    def queue_b(t):
        base = BF + (t % NSB) * 32
        def mk(j):
            def f():
                hf, s_ = j // 4, j % 4
                if s_ == 0:
                    a.e(f"s_add_u32 s37, s54, {t}"); a.e("s_and_b32 s37, s37, 31"); a.e("s_lshl_b32 s37, s37, 13"); a.e("s_add_u32 s37, s37, s25"); a.e(f"s_add_u32 s37, s37, {hf*4096}")
                a.e("s_mov_b64 exec, s[38:39]")
                b_id[t] = a.vm(f"buffer_load_dwordx4 {vr(base+4*j,4)}, v{XO}, s[4:7], s37 offen offset:{s_*1024}{' nt' if OPT.get('nto') else ''}")
                a.e("s_mov_b64 exec, -1")
            return f
        for j in range(8): fillers.append(mk(j))
    for t in range(max(NS, NSB - 1)):
        if t < NS: issue_tile(t)
        if t < NSB - 1: issue_b(t)
    items = []
    for t in range(NT_):
        for s in range(8):
            for T in range(2):
                first = (s == 0 and T == 0)
                def pre_read(t=t, first=first):
                    if first:
                        a.c(f"---- step {t}")
                        a.wait(vm=dma_id[t])
                        a.e("s_barrier")
                        if t % 4 == 0: a.stamp(16 + t // 4, "s[64:67]", 75)
                        if TOUCH and t == 4: touch(1)
                        if t >= 2 and t + NS - 2 < NT_: queue_tile(t + NS - 2)
                def rd(buf, t=t, s=s, T=T):
                    sb = (t % NS) * SLOT
                    va = VA + T
                    if sb >= 65536: va += 2; sb -= 65536
                    assert sb < 65536
                    a.lg(f"ds_read_b64_tr_b16 {vr(buf,2)}, v{va} offset:{sb + s*2048}")
                    return a.lg(f"ds_read_b64_tr_b16 {vr(buf+2,2)}, v{va} offset:{sb + s*2048 + 512}")
                def pm(t=t, first=first):
                    if first:
                        a.wait(vm=b_id[t])
                        if t + NSB - 1 < NT_: queue_b(t + NSB - 1)
                def mm(buf, t=t, s=s, T=T):
                    bb = BF + (t % NSB) * 32
                    c = "0" if (t == 0 and s == 0) else vr(ACC+16*T, 16)
                    a.e(f"v_mfma_f32_32x32x16_bf16 {vr(ACC+16*T,16)}, {vr(buf,4)}, {vr(bb+4*s,4)}, {c}")
                items.append(Item(pre_read, rd, pm, mm))
    run_pipeline(a, items, AF, NBUF, NRING, fillers)
    a.stamp(11, "s[64:67]", 75)
    a.stamp(13, "s[64:67]", 75, True)
    a.e("s_nop 7"); a.e("s_nop 5")
    for T in range(2):
        for u in range(2):
            for r in range(4):
                a.e(f"v_cvt_pk_bf16_f32 v{BF+4*(2*T+u)+r}, v{ACC+16*T+8*u+2*r}, v{ACC+16*T+8*u+2*r+1}")
    a.e("s_and_saveexec_b64 s[42:43], s[40:41]")
    a.e("s_cbranch_execz L_oproj_done")
    for T in range(2):
        for u in range(2):
            a.vm(f"buffer_store_dwordx4 {vr(BF+4*(2*T+u),4)}, v78, s[20:23], s28 offen offset:{T*64+u*32}{FST}")
    a.label("L_oproj_done")
    a.e("s_endpgm")
    return a.text()

def kd(name, vgpr, sgpr=102):
    return f""".amdhsa_kernel {name}
  .amdhsa_next_free_vgpr {vgpr}
  .amdhsa_next_free_sgpr {sgpr}
  .amdhsa_accum_offset {(vgpr+3)//4*4}
  .amdhsa_group_segment_fixed_size 0
  .amdhsa_kernarg_size 104
  .amdhsa_user_sgpr_count 2
  .amdhsa_user_sgpr_kernarg_segment_ptr 1
  .amdhsa_system_sgpr_workgroup_id_x 1
.end_amdhsa_kernel
"""

LDS2 = 16384 * int(OPT.get("ns2", 8))
hdr = f"""; fused MHA x2: kernel 1 = Q projection + attention per (block, batch, head); kernel 2 = output projection
; @launch kernel=attn_kernel grid=(512,1,1) block=(256,1,1) lds=81920
; @launch kernel=oproj_kernel grid=(256,1,1) block=(256,1,1) lds={LDS2}
.amdgcn_target "amdgcn-amd-amdhsa--gfx950"
.text
"""
body = hdr
for name, fn in (("attn_kernel", gen_attn), ("oproj_kernel", gen_oproj)):
    body += f".globl {name}\n.p2align 8\n.type {name},@function\n" + fn()
body += '.section .rodata,"a"\n.p2align 6\n' + kd("attn_kernel", 256) + ".p2align 6\n" + kd("oproj_kernel", 80 + 32 * int(OPT.get("nsb", 5)))
open(OUT, "w").write(body)
```
